```python
import torch

def _softmax(x, axis=-1):
    return torch.softmax(x, dim=axis)
def _gelu(x):
    return torch.nn.functional.gelu(x, approximate="tanh")
def _silu(x):
    return torch.nn.functional.silu(x)
def _sigmoid(x):
    return torch.sigmoid(x)
def _layernorm(x, axis=-1, eps=1e-5):
    m = x.mean(dim=axis, keepdim=True)
    v = x.var(dim=axis, keepdim=True, unbiased=False)
    return (x - m) / torch.sqrt(v + eps)
def _scatter_add(tgt, idx, src, axis=0):
    return tgt.clone().index_add_(axis, idx, src)
def _segment_sum(src, seg, n):
    out = torch.zeros((n,) + src.shape[1:], dtype=src.dtype)
    return out.index_add_(0, seg, src)
def _pad(x, pw):
    flat = tuple(v for pair in reversed(pw) for v in pair)
    return torch.nn.functional.pad(x, flat)

kernel_name = 'recurrent_scan__ssm_conv_h3__moe_arch_mod__prompt'

def setup_inputs():

    _w = (lambda a: (lambda t: t.to(torch.bfloat16) if t.is_floating_point() else t)(torch.as_tensor(a)))
    def _A_setup():
        B, S, D = 1, 2048, 640
        ks = 4
        return {
            "q": _w((lambda *s: torch.randn(*s, dtype=torch.bfloat16) * 0.1)(B, S, D)),
            "k": _w((lambda *s: torch.randn(*s, dtype=torch.bfloat16) * 1.6)(B, S, D)),
            "v": _w((lambda *s: torch.randn(*s, dtype=torch.bfloat16) * 1.6)(B, S, D)),
            "shift_k": _w((lambda *s: torch.randn(*s, dtype=torch.bfloat16) * 1.6)(D, ks) * 0.5),
            "ssm_k": _w((lambda *s: torch.randn(*s, dtype=torch.bfloat16) * 1.6)(D, S) * (1.0 / S ** 0.5)),
            "ssm_D": _w((lambda *s: torch.randn(*s, dtype=torch.bfloat16) * 1.6)(D)),
        }
    _A_in = _A_setup()

    def _B_setup():
        B, S, D, F, C = 1, 2048, 640, 1536, 8
        return {
            "x": _w((lambda *s: torch.randn(*s, dtype=torch.bfloat16) * 0.1)(B, S, D)),
            "w_r": _w((lambda *s: torch.randn(*s, dtype=torch.bfloat16) * 1.6)(D)),
            "w_gate": _w((lambda *s: torch.randn(*s, dtype=torch.bfloat16) * 1.6)(D, F)),
            "w_up": _w((lambda *s: torch.randn(*s, dtype=torch.bfloat16) * 1.6)(D, F)),
            "w_down": _w((lambda *s: torch.randn(*s, dtype=torch.bfloat16) * 1.6)(F, D)),
        }
    _B_in = _B_setup()

    return {
        "A_q": _A_in["q"],
        "A_k": _A_in["k"],
        "A_v": _A_in["v"],
        "A_shift_k": _A_in["shift_k"],
        "A_ssm_k": _A_in["ssm_k"],
        "A_ssm_D": _A_in["ssm_D"],
        "B_x": _B_in["x"],
        "B_w_r": _B_in["w_r"],
        "B_w_gate": _B_in["w_gate"],
        "B_w_up": _B_in["w_up"],
        "B_w_down": _B_in["w_down"],
    }

def reference(A_q, A_k, A_v, A_shift_k, A_ssm_k, A_ssm_D, B_x, B_w_r, B_w_gate, B_w_up, B_w_down):
    def _A_ref(q, k, v, shift_k, ssm_k, ssm_D):
        B, S, D = q.shape
        ks = shift_k.shape[-1]
        k_pad = _pad(k, ((0, 0), (ks - 1, 0), (0, 0)))
        k_shift = torch.zeros_like(k)
        for t in range(ks):
            k_shift = k_shift + k_pad[:, t:t + S, :] * shift_k[:, ks - 1 - t][None, None, :]
        kv = k_shift * v
        L = 2 * S
        kv_pad = _pad(kv, ((0, 0), (0, S), (0, 0)))
        kf_pad = _pad(ssm_k, ((0, 0), (0, S)))
        kv_f = (lambda x, axes=(-2,-1): torch.fft.rfft2(x.float(), dim=axes))(kv_pad[:, None, :, :], axes=(1, 2))
        kf_f = (lambda x, axes=(-2,-1): torch.fft.rfft2(x.float(), dim=axes))(kf_pad[:, None, :], axes=(1, 2))
        kf_f = (lambda x, *d: x.permute(*d))(kf_f, 1, 2, 0)
        y_f = kv_f * kf_f[None, :, :, :]
        y = (lambda x, s, axes=(-2,-1): torch.fft.irfft2(x, s=s, dim=axes).to(torch.bfloat16))(y_f, (1, L), axes=(1, 2))[:, 0, :S, :]
        y = y + kv * ssm_D[None, None, :]
        return q * y

    def _B_ref(x, w_r, w_gate, w_up, w_down):
        B, S, D = x.shape
        C = 8
        r = x @ w_r
        idx = torch.argsort(-r, axis=-1)[:, :C]
        idx_e = (lambda x, n, axis: torch.repeat_interleave(x, n, dim=axis))(idx.reshape(B, C, 1), D, axis=2)
        x_sel = (lambda x, i, axis: torch.take_along_dim(x, i, dim=axis))(x, idx_e, axis=1)
        g = _silu(x_sel @ w_gate)
        u = x_sel @ w_up
        y = (g * u) @ w_down
        r_sel = _sigmoid((lambda x, i, axis: torch.take_along_dim(x, i, dim=axis))(r, idx, axis=1))
        y = y * r_sel.reshape(B, C, 1)
        b_off = (torch.arange(B) * S).reshape(B, 1)
        flat_idx = (idx + b_off).reshape(B * C)
        zero = (x * 0.0).reshape(B * S, D)
        upd = _scatter_add(zero, flat_idx, y.reshape(B * C, D), axis=0)
        return x + upd.reshape(B, S, D)

    x = A_q
    xn = _layernorm(x, axis=-1)
    s = _A_ref(xn, A_k, A_v, A_shift_k, A_ssm_k, A_ssm_D)
    g = _silu(_B_ref(xn, B_w_r, B_w_gate, B_w_up, B_w_down))
    return x + s * g
```

```python
KNAME = "recurrent_scan__ssm_conv_h3__moe_arch_mod__prompt"


class Asm:
    def __init__(self):
        self.lines = []

    def __call__(self, text=""):
        for ln in text.split("\n"):
            self.lines.append("    " + ln.strip() if ln.strip() and not ln.strip().endswith(":") else ln.strip())

    def label(self, name):
        self.lines.append(name + ":")

    def text(self):
        return "\n".join(self.lines) + "\n"


def kernel_block(name, body, vgpr, sgpr=102, accum=None):
    accum = accum if accum is not None else (min(vgpr, 256) + 3) // 4 * 4
    return f""".text
.globl {name}
.p2align 8
.type {name},@function
{name}:
{body}
.section .rodata,"a"
.p2align 6
.amdhsa_kernel {name}
  .amdhsa_next_free_vgpr {vgpr}
  .amdhsa_next_free_sgpr {sgpr}
  .amdhsa_accum_offset {accum}
  .amdhsa_group_segment_fixed_size 0
  .amdhsa_kernarg_size 112
  .amdhsa_user_sgpr_count 2
  .amdhsa_user_sgpr_kernarg_segment_ptr 1
  .amdhsa_system_sgpr_workgroup_id_x 1
  .amdhsa_float_denorm_mode_32 3
.end_amdhsa_kernel
"""


def single(body, grid, block, lds, vgpr, sgpr=102, accum=None):
    head = f"; @launch grid=({grid},1,1) block=({block},1,1) lds={lds}\n.amdgcn_target \"amdgcn-amd-amdhsa--gfx950\"\n"
    return head + kernel_block(KNAME + "_kernel", body, vgpr, sgpr, accum)
```

```python
import re

TRANS = ("v_exp_f32", "v_log_f32", "v_rcp_f32", "v_rsq_f32", "v_sqrt_f32", "v_sin_f32", "v_cos_f32", "v_rcp_iflag_f32")
REG = re.compile(r"\b([vs])(\d+)\b|\b([vs])\[(\d+):(\d+)\]|\b(vcc|exec|m0|scc)(?:_lo|_hi)?\b")


def regs_of(tok):
    out = set()
    for m in REG.finditer(tok):
        if m.group(1):
            out.add((m.group(1), int(m.group(2))))
        elif m.group(3):
            out.update((m.group(3), i) for i in range(int(m.group(4)), int(m.group(5)) + 1))
        else:
            out.add((m.group(6), 0))
    return out


def split_ops(rest):
    ops, depth, cur = [], 0, ""
    for ch in rest:
        if ch == "[":
            depth += 1
        if ch == "]":
            depth -= 1
        if ch == "," and depth == 0:
            ops.append(cur.strip()); cur = ""
        else:
            cur += ch
    if cur.strip():
        ops.append(cur.strip())
    return ops


class I:
    def __init__(self, line):
        self.line = line
        t = line.split(";")[0].strip()
        self.is_label = t.endswith(":") or not t or t.startswith(".")
        self.op = "" if self.is_label else t.split()[0]
        rest = t[len(self.op):].strip() if not self.is_label else ""
        ops = split_ops(rest)
        if ops:
            last = ops[-1].split()
            ops[-1] = last[0] if last else ""
            self.mods = " ".join(last[1:])
        else:
            self.mods = ""
        self.ops = ops
        op = self.op
        self.valu = op.startswith("v_")
        self.mfma = op.startswith("v_mfma")
        self.trans = op.replace("_e32", "").replace("_e64", "") in TRANS
        self.dpp = "_dpp" in op
        self.permlane = op.startswith("v_permlane")
        self.readlane = op.startswith("v_readlane") or op.startswith("v_readfirstlane") or op.startswith("v_writelane")
        self.dot = op.startswith("v_dot")
        self.vmem = op.startswith(("buffer_", "global_", "flat_"))
        self.ds = op.startswith("ds_")
        self.salu = op.startswith("s_")
        self.wr, self.rd = set(), set()
        self.srcC = set(); self.srcAB = set(); self.store_data = set()
        if self.valu:
            ndst = 1
            if op.startswith(("v_add_co", "v_sub_co", "v_subrev_co", "v_addc_co", "v_subb_co", "v_subbrev_co", "v_div_scale", "v_mad_u64")):
                ndst = 2
            for o in ops[:ndst]:
                self.wr |= regs_of(o)
            for o in ops[ndst:]:
                self.rd |= regs_of(o)
            if op.startswith("v_cmpx"):
                self.wr.add(("exec", 0))
            if self.permlane:
                self.wr |= regs_of(ops[1]); self.rd |= regs_of(ops[0])
            if op.startswith(("v_fmac", "v_dot2c", "v_writelane")) or (self.dpp and "bound_ctrl" not in self.mods):
                self.rd |= regs_of(ops[0])
            if self.mfma:
                self.srcAB = regs_of(ops[1]) | regs_of(ops[2]); self.srcC = regs_of(ops[3])
        elif self.vmem:
            store = "store" in op or ("atomic" in op)
            lds = " lds" in " " + self.mods
            if op.startswith("buffer_"):
                if op in ("buffer_wbl2", "buffer_inv"):
                    pass
                elif lds:
                    for o in ops:
                        self.rd |= regs_of(o)
                    self.rd.add(("m0", 0))
                elif store:
                    for o in ops:
                        self.rd |= regs_of(o)
                    self.store_data = regs_of(ops[0])
                else:
                    self.wr |= regs_of(ops[0])
                    for o in ops[1:]:
                        self.rd |= regs_of(o)
            else:
                if store:
                    for o in ops:
                        self.rd |= regs_of(o)
                    self.store_data = regs_of(ops[1])
                else:
                    self.wr |= regs_of(ops[0])
                    for o in ops[1:]:
                        self.rd |= regs_of(o)
            self.wide = "x3" in op or "x4" in op
        elif self.ds:
            if op.startswith(("ds_write", "ds_add_u32")):
                for o in ops:
                    self.rd |= regs_of(o)
            else:
                self.wr |= regs_of(ops[0])
                for o in ops[1:]:
                    self.rd |= regs_of(o)
        elif self.salu and ops:
            if op.startswith(("s_cmp", "s_bitcmp", "s_cbranch", "s_branch", "s_waitcnt", "s_nop", "s_sleep", "s_setprio")):
                for o in ops:
                    self.rd |= regs_of(o)
            else:
                self.wr |= regs_of(ops[0])
                for o in ops[1:]:
                    self.rd |= regs_of(o)
                if "saveexec" in op:
                    self.wr.add(("exec", 0))

    def states(self):
        if self.is_label:
            return 0
        if self.op == "s_nop":
            return int(self.ops[0], 0) + 1
        return 1

    def passes(self):
        if "32x32" in self.op:
            return 8
        return 4


def need(p, c):
    n = 0
    vw = {r for r in p.wr if r[0] == "v"}
    sw = {r for r in p.wr if r[0] in ("s", "vcc")}
    if p.valu and not p.mfma:
        if vw & c.rd:
            if c.dpp or c.permlane:
                n = max(n, 2)
            if c.readlane:
                n = max(n, 1)
            if c.mfma:
                n = max(n, 2)
            if p.trans and c.valu and not c.trans:
                n = max(n, 1)
            if p.dot and c.valu and c.op != p.op:
                n = max(n, 3)
        if p.dot and c.valu and (vw & c.wr) and c.op != p.op:
            n = max(n, 3)
        if p.dot and c.op == p.op and (vw & (regs_of(c.ops[1]) | regs_of(c.ops[2]))):
            n = max(n, 3)
        if sw & c.rd:
            if c.vmem:
                n = max(n, 5)
            elif c.readlane:
                n = max(n, 4)
            elif c.valu:
                carry = c.op.startswith(("v_addc_co", "v_subb_co", "v_subbrev_co")) and not (sw & (regs_of(c.ops[2]) | regs_of(c.ops[3])))
                if not carry:
                    n = max(n, 2)
            elif c.salu:
                n = max(n, 1)
        if ("exec", 0) in p.wr:
            if c.dpp:
                n = max(n, 5)
            if c.readlane or c.permlane or c.mfma:
                n = max(n, 4)
            if c.valu and ("exec", 0) in c.rd:
                n = max(n, 2)
    if p.mfma:
        big = {4: 8, 8: 12}[p.passes()]
        if c.mfma:
            if vw & c.srcAB:
                n = max(n, big)
            if vw & c.srcC and not (c.srcC == vw and c.passes() == p.passes()):
                n = max(n, big - 2)
            if vw & c.wr and not (vw & c.srcC):
                n = max(n, big)
        elif (c.valu or c.vmem or c.ds) and (vw & (c.rd | c.wr)):
            n = max(n, big)
        if c.valu and not c.mfma and (p.srcC & c.wr):
            n = max(n, {4: 3, 8: 7}[p.passes()])
    if p.vmem and p.store_data and p.wide and (p.store_data & c.wr):
        n = max(n, 2 if c.valu else 1)
    if p.salu and ("m0", 0) in p.wr and ("m0", 0) in c.rd and (c.vmem or c.ds):
        n = max(n, 1)
    return n


def fix(lines):
    out, hist, added = [], [], 0
    for ln in lines:
        c = I(ln)
        if not c.is_label:
            dist, pad = 0, 0
            for p in reversed(hist):
                if dist >= 20:
                    break
                if not p.is_label:
                    pad = max(pad, need(p, c) - dist)
                dist += p.states()
            if pad > 0:
                nop = I(f"    s_nop {pad - 1}")
                out.append(nop.line); hist.append(nop); added += 1
        out.append(ln); hist.append(c)
    return out, added


def check_loop(lines):
    once, _ = fix(lines)
    twice, _ = fix(once + once)
    return len(twice) - 2 * len(once)
```

```python
import sys
from gen import Asm, kernel_block, KNAME
import hazard

KV = 0x000000
YMAIN = 0x400000
YEXT = 0x700000
RBOX = 0x880000
STBOX = 0x890000
HBOX = 0x8A0000
IDXBOX = 0x8B0000
EPOCH = 0x8B1000
STAMPS = 0x900000
WS_USED = 0xA00000

HC_K = 4160
HC_S = 4 * HC_K
RED = 0
SEL = 640
SEL_G = SEL
SEL_C = SEL + 64
SEL_N = SEL + 64 + 80
SEL_T = SEL + 64 + 96
BIG = 1280
XB = BIG
XS = 4576
HC0 = 19712
LDS_BYTES = HC0 + 4 * HC_S + 1024

vTID, vLANE = 0, 1
vX, vC = 10, 26
vQ, vK, vV, vWR, vSH = 42, 50, 61, 69, 70
vR = 128
sQ, sKK, sVV, sOUT, sWS, sRA, sRB = 32, 36, 40, 44, 48, 52, 56
sW, sWAVE, sT, sIDX, sCLS = 60, 61, 62, 63, 64
sST = 66
sSKIP = 65
NROLE = 16
SPIN = 400000


def srd(a, s, lo, size):
    a(f"s_mov_b32 s{s}, s{lo}\ns_mov_b32 s{s+1}, s{lo+1}\ns_mov_b32 s{s+2}, {size}\ns_mov_b32 s{s+3}, 0x20000")


class Gen:
    def __init__(self, fused=True, stamps=False, ld="nt"):
        self.fused, self.stamps, self.ld = fused, stamps, ld
        self.a = Asm()
        self.uid = 0
        self.pub = "sc1" if fused else ""
        self.get = "sc1" if fused else ""

    def lab(self, base):
        self.uid += 1
        return f"L_{base}_{self.uid}"

    def stamp(self, i):
        if self.stamps:
            self.a(f"s_memrealtime s[96:97]\ns_waitcnt lgkmcnt(0)\nv_writelane_b32 v254, s96, {i}")

    def stamps_out(self):
        if self.stamps:
            L = self.lab("nost")
            self.a(f"""
            s_cmp_lg_u32 s{sWAVE}, 0
            s_cbranch_scc1 {L}
            s_lshl_b32 s96, s{sW}, 8
            s_add_u32 s96, s96, {STAMPS}
            v_lshlrev_b32 v253, 2, v{vLANE}
            buffer_store_dword v254, v253, s[{sWS}:{sWS+3}], s96 offen
            {L}:
            """)

    def prologue(self, end, code_end):
        a = self.a
        L = self.lab("pc")
        a(f"""
        s_cmp_ge_u32 s2, 256
        s_cbranch_scc1 {end}
        s_load_dwordx16 s[4:19], s[0:1], 0
        s_load_dwordx8 s[20:27], s[0:1], 64
        s_load_dwordx4 s[28:31], s[0:1], 96
        s_getpc_b64 s[82:83]
        {L}:
        v_lshlrev_b32 v2, 7, v0
        v_min_u32 v2, {code_end}-{L}-4, v2
        global_load_dword v3, v2, s[82:83]
        v_lshrrev_b32 v4, 6, v0
        v_and_b32 v{vLANE}, 63, v0
        v_lshlrev_b32 v5, 2, v0
        v_readfirstlane_b32 s{sWAVE}, v4
        s_mov_b32 s{sW}, s2
        s_and_b32 s84, s2, 7
        s_lshr_b32 s85, s2, 3
        s_mul_i32 s86, s84, 20
        s_add_u32 s{sIDX}, s86, s85
        s_mov_b32 s{sCLS}, 1
        s_mul_i32 s86, s84, 6
        s_add_u32 s86, s86, s85
        s_sub_u32 s86, s86, 20
        s_cmp_ge_u32 s85, 20
        s_cselect_b32 s{sIDX}, s86, s{sIDX}
        s_cselect_b32 s{sCLS}, 2, s{sCLS}
        s_mul_i32 s86, s84, 5
        s_add_u32 s86, s86, s85
        s_sub_u32 s86, s86, 26
        s_cmp_ge_u32 s85, 26
        s_cselect_b32 s{sIDX}, s86, s{sIDX}
        s_cselect_b32 s{sCLS}, 3, s{sCLS}
        s_cmp_ge_u32 s85, 31
        s_cselect_b32 s{sCLS}, 0, s{sCLS}
        s_mul_i32 s87, s2, 10240
        s_add_u32 s88, s87, 5120
        """)
        if self.stamps:
            a("v_mov_b32 v254, 0")
            self.stamp(0)
        a("s_waitcnt lgkmcnt(0)")
        srd(a, sQ, 4, 2621440)
        srd(a, sWS, 30, WS_USED)
        if self.fused:
            a(f"v_mov_b32 v6, {EPOCH}\nbuffer_load_dword v7, v6, s[{sWS}:{sWS+3}], 0 offen sc1")

    def load_q(self):
        a = self.a
        for r in range(8):
            a(f"buffer_load_dword v{vQ+r}, v5, s[{sQ}:{sQ+3}], s{87 + r // 4} offen offset:{(r % 4) * 1280} {self.ld}")

    def load_kv(self):
        a = self.a
        srd(a, sKK, 6, 2621440)
        srd(a, sVV, 8, 2621440)
        a(f"""
        global_load_dword v{vWR}, v5, s[18:19]
        s_sub_u32 s89, s87, 3840
        s_cmp_eq_u32 s{sW}, 0
        s_cselect_b32 s89, 0, s89
        s_cselect_b32 s90, 0, -1
        v_lshlrev_b32 v6, 4, v0
        global_load_dwordx4 v[{vSH}:{vSH+3}], v6, s[10:11]
        """)
        for r in range(3):
            a(f"buffer_load_dword v{vK+r}, v5, s[{sKK}:{sKK+3}], s89 offen offset:{r * 1280} {self.ld}")
        for r in range(8):
            a(f"buffer_load_dword v{vK+3+r}, v5, s[{sKK}:{sKK+3}], s{87 + r // 4} offen offset:{(r % 4) * 1280} {self.ld}")
        for r in range(8):
            a(f"buffer_load_dword v{vV+r}, v5, s[{sVV}:{sVV+3}], s{87 + r // 4} offen offset:{(r % 4) * 1280} {self.ld}")

    def role_loads(self, classes):
        a = self.a
        done = self.lab("rl_done")
        ld = self.ld

        def dummies(n):
            for _ in range(n):
                a(f"buffer_load_dword v9, v5, s[{sRB}:{sRB+3}], 0 offen")

        nxt = self.lab("rl")
        srd(a, sRB, 12, 0)
        if 1 in classes:
            a(f"""
            s_cmp_lg_u32 s{sCLS}, 1
            s_cbranch_scc1 {nxt}
            s_cmp_eq_u32 s{sWAVE}, 4
            s_cbranch_scc1 {nxt}
            s_lshr_b32 s91, s{sIDX}, 1
            s_lshl_b32 s91, s91, 3
            s_and_b32 s92, s{sIDX}, 1
            s_add_u32 s91, s91, s92
            s_lshl_b32 s92, s{sWAVE}, 1
            s_add_u32 s91, s91, s92
            s_lshl_b32 s92, s91, 1
            s_and_b32 s93, s92, 2
            s_lshl_b32 s93, s93, 3
            s_andn2_b32 s92, s92, 3
            s_load_dword s94, s[14:15], s92
            s_lshl_b32 s91, s91, 12
            """)
            srd(a, sRA, 12, 2621440)
            a(f"""
            v_lshlrev_b32 v6, 4, v{vLANE}
            v_add_u32 v6, s91, v6
            v_subrev_u32 v8, 8, v6
            v_max_i32 v4, 0, v8
            """)
            for it in range(4):
                a(f"buffer_load_dwordx4 v[{vR+8*it+4}:{vR+8*it+7}], v6, s[{sRA}:{sRA+3}], 0 offen offset:{it*1024} {ld}")
                if it == 0:
                    a(f"buffer_load_dwordx2 v[{vR+2}:{vR+3}], v4, s[{sRA}:{sRA+3}], 0 offen {ld}")
                else:
                    a(f"buffer_load_dwordx2 v[{vR+8*it+2}:{vR+8*it+3}], v6, s[{sRA}:{sRA+3}], 0 offen offset:{it*1024-8} {ld}")
            dummies(NROLE - 8)
            a(f"s_branch {done}")
        a(f"{nxt}:")
        nxt = self.lab("rl")
        if 2 in classes:
            a(f"s_cmp_lg_u32 s{sCLS}, 2\ns_cbranch_scc1 {nxt}")
            srd(a, sRA, 20, 1966080)
            srd(a, sRB, 22, 1966080)
            a(f"""
            v_lshrrev_b32 v6, 2, v0
            v_mul_u32_u24 v6, 3072, v6
            v_and_b32 v8, 3, v0
            v_lshl_add_u32 v6, v8, 4, v6
            s_lshl_b32 s91, s{sIDX}, 6
            """)
            for i in range(8):
                a(f"buffer_load_dwordx4 v[{vR+4*i}:{vR+4*i+3}], v6, s[{sRA}:{sRA+3}], s91 offen {ld}")
                a(f"buffer_load_dwordx4 v[{vR+32+4*i}:{vR+32+4*i+3}], v6, s[{sRB}:{sRB+3}], s91 offen {ld}")
                if i < 7:
                    a("s_add_u32 s91, s91, 245760")
            a(f"s_branch {done}")
        a(f"{nxt}:")
        nxt = self.lab("rl")
        if 3 in classes:
            a(f"s_cmp_lg_u32 s{sCLS}, 3\ns_cbranch_scc1 {nxt}")
            srd(a, sRA, 24, 1966080)
            a(f"""
            v_lshrrev_b32 v6, 1, v0
            v_mul_u32_u24 v6, 1280, v6
            v_and_b32 v8, 1, v0
            v_lshl_add_u32 v6, v8, 4, v6
            s_lshl_b32 s91, s{sIDX}, 5
            v_add_u32 v6, s91, v6
            """)
            for i in range(10):
                a(f"buffer_load_dwordx4 v[{vR+4*i}:{vR+4*i+3}], v6, s[{sRA}:{sRA+3}], 0 offen {ld}")
                if i < 9:
                    a("v_add_u32 v6, 204800, v6")
            dummies(NROLE - 10)
            a(f"s_branch {done}")
        a(f"{nxt}:")
        dummies(NROLE)
        a(f"{done}:")

    def stats(self, after):
        a = self.a
        S1, S2, S3, WS_ = 74, 82, 90, 98
        a(f"s_waitcnt vmcnt({after})")
        self.stamp(1)
        a("s_mov_b32 s84, 0x3f803f80")
        if self.fused:
            a(f"v_readfirstlane_b32 s85, v7\ns_mul_i32 s85, s85, 0x41c64e6d\ns_add_u32 s{sT}, s85, 0x3039")
        else:
            a(f"s_mov_b32 s{sT}, 0x1234567")
        for r in range(8):
            a(f"""
            v_dot2_f32_bf16 v{S1+r}, v{vQ+r}, s84, 0
            v_dot2_f32_bf16 v{S2+r}, v{vQ+r}, v{vQ+r}, 0
            v_dot2_f32_bf16 v{S3+r}, v{vQ+r}, v{vWR}, 0
            """)
        a(f"v_dot2_f32_bf16 v{WS_}, v{vWR}, s84, 0")
        for r in range(4):
            for b in (S1, S2, S3):
                a(f"v_permlane32_swap_b32 v{b+r}, v{b+r+4}")
        a(f"v_mov_b32 v{WS_+1}, v{WS_}")
        for r in range(4):
            for b in (S1, S2, S3):
                a(f"v_add_f32 v{b+r}, v{b+r}, v{b+r+4}")
        a(f"v_permlane32_swap_b32 v{WS_}, v{WS_+1}")
        for r in range(2):
            for b in (S1, S2, S3):
                a(f"v_permlane16_swap_b32 v{b+r}, v{b+r+2}")
        a(f"v_add_f32 v{WS_}, v{WS_}, v{WS_+1}")
        for r in range(2):
            for b in (S1, S2, S3):
                a(f"v_add_f32 v{b+r}, v{b+r}, v{b+r+2}")
        a(f"v_mov_b32 v{WS_+1}, v{WS_}")
        T = 100
        for k, b in enumerate((S1, S2, S3)):
            a(f"v_add_f32_dpp v{T+k}, v{b}, v{b} row_ror:8 row_mask:0xf bank_mask:0x3")
        a(f"v_permlane16_swap_b32 v{WS_}, v{WS_+1}")
        for k, b in enumerate((S1, S2, S3)):
            a(f"v_add_f32_dpp v{T+k}, v{b+1}, v{b+1} row_ror:8 row_mask:0xf bank_mask:0xc")
        a(f"v_add_f32 v{T+3}, v{WS_}, v{WS_+1}")
        a(f"""
        v_lshrrev_b32 v4, 3, v{vLANE}
        v_lshlrev_b32 v4, 4, v4
        v_add_f32_dpp v{T+3}, v{T+3}, v{T+3} row_ror:8 row_mask:0xf bank_mask:0xf
        """)
        for mod in ("row_half_mirror", "quad_perm:[1,0,3,2]", "quad_perm:[2,3,0,1]"):
            for k in range(4):
                a(f"v_add_f32_dpp v{T+k}, v{T+k}, v{T+k} {mod} row_mask:0xf bank_mask:0xf")
        a(f"""
        s_lshl_b32 s85, s{sWAVE}, 7
        s_add_u32 s85, s85, {RED}
        v_add_u32 v4, s85, v4
        s_mov_b32 s92, 0x01010101
        s_mov_b32 exec_lo, s92
        s_mov_b32 exec_hi, s92
        ds_write_b128 v4, v[{T}:{T+3}]
        s_mov_b64 exec, -1
        v_and_b32 v6, 7, v{vLANE}
        v_lshlrev_b32 v4, 4, v6
        s_waitcnt lgkmcnt(0)
        s_barrier
        """)
        P = 74
        for wv in range(5):
            a(f"ds_read_b128 v[{P+4*wv}:{P+4*wv+3}], v4 offset:{RED + 128*wv}")
        a(f"""
        s_lshl_b32 s85, s{sW}, 3
        v_add_u32 v8, s85, v6
        v_sub_u32 v104, 2047, v8
        s_mov_b32 s84, 0x3acccccd
        s_mov_b32 s86, 0xffff0000
        s_waitcnt lgkmcnt(0)
        v_pk_add_f32 v[{P}:{P+1}], v[{P}:{P+1}], v[{P+4}:{P+5}]
        v_pk_add_f32 v[{P+2}:{P+3}], v[{P+2}:{P+3}], v[{P+6}:{P+7}]
        v_pk_add_f32 v[{P+8}:{P+9}], v[{P+8}:{P+9}], v[{P+12}:{P+13}]
        v_pk_add_f32 v[{P+10}:{P+11}], v[{P+10}:{P+11}], v[{P+14}:{P+15}]
        v_pk_add_f32 v[{P}:{P+1}], v[{P}:{P+1}], v[{P+16}:{P+17}]
        v_pk_add_f32 v[{P+2}:{P+3}], v[{P+2}:{P+3}], v[{P+18}:{P+19}]
        v_pk_add_f32 v[{P}:{P+1}], v[{P}:{P+1}], v[{P+8}:{P+9}]
        v_pk_add_f32 v[{P+2}:{P+3}], v[{P+2}:{P+3}], v[{P+10}:{P+11}]
        v_pk_mul_f32 v[{P}:{P+1}], v[{P}:{P+1}], s[84:85] op_sel_hi:[1,0]
        v_fma_f32 v{P+1}, -v{P}, v{P}, v{P+1}
        v_max_f32 v{P+1}, 0, v{P+1}
        v_cvt_pk_bf16_f32 v{P+4}, v{P}, v{P+1}
        v_lshlrev_b32 v100, 16, v{P+4}
        v_and_b32 v{P+1}, s86, v{P+4}
        v_add_f32 v{P+1}, 0x3727c5ac, v{P+1}
        v_cvt_pk_bf16_f32 v{P+4}, v{P+1}, v{P+1}
        v_and_b32 v{P+1}, s86, v{P+4}
        v_sqrt_f32 v{P+1}, v{P+1}
        v_fma_f32 v{P+2}, -v100, v{P+3}, v{P+2}
        v_cvt_pk_bf16_f32 v{P+4}, v{P+1}, v{P+1}
        v_and_b32 v{P+1}, s86, v{P+4}
        v_rcp_f32 v101, v{P+1}
        v_mov_b32 v103, s{sT}
        v_mul_f32 v{P+2}, v{P+2}, v101
        v_cvt_pk_bf16_f32 v{P+4}, v{P+2}, v{P+2}
        v_and_b32 v102, s86, v{P+4}
        v_ashrrev_i32 v{P+5}, 31, v102
        v_or_b32 v{P+5}, 0x80000000, v{P+5}
        v_xor_b32 v{P+5}, v102, v{P+5}
        v_and_or_b32 v104, v{P+5}, s86, v104
        v_mov_b32 v105, s{sT}
        """)
        L = self.lab("nopub")
        a(f"""
        s_cmp_lg_u32 s{sWAVE}, 1
        s_cbranch_scc1 {L}
        v_lshlrev_b32 v4, 3, v8
        v_lshlrev_b32 v6, 4, v8
        s_mov_b32 s84, {RBOX}
        s_mov_b32 s85, {STBOX}
        s_mov_b64 exec, 0xff
        buffer_store_dwordx2 v[104:105], v4, s[{sWS}:{sWS+3}], s84 offen {self.pub}
        buffer_store_dwordx4 v[100:103], v6, s[{sWS}:{sWS+3}], s85 offen {self.pub}
        s_mov_b64 exec, -1
        {L}:
        """)
        for r in range(8):
            a(f"v_readlane_b32 s{sST+2*r}, v100, {r}\nv_readlane_b32 s{sST+2*r+1}, v101, {r}")
        self.stamp(2)

    def kv(self, after):
        a = self.a
        KF, SH, ACC, VF = 74, 96, 104, 120
        G = 42
        a("s_mov_b32 s86, 0xffff0000")
        for r in range(8):
            a(f"v_lshlrev_b32 v{vX+2*r}, 16, v{vQ+r}\nv_and_b32 v{vX+2*r+1}, s86, v{vQ+r}")
        a(f"s_waitcnt vmcnt({after + 8})")
        for j in range(4):
            for c in range(2):
                src = vSH + 2 * c + j // 2
                a(f"v_lshlrev_b32 v{SH+2*j+c}, 16, v{src}" if j % 2 == 0 else f"v_and_b32 v{SH+2*j+c}, s86, v{src}")
        for r in range(3):
            a(f"v_and_b32 v{vK+r}, s90, v{vK+r}")
        for r in range(11):
            a(f"v_lshlrev_b32 v{KF+2*r}, 16, v{vK+r}\nv_and_b32 v{KF+2*r+1}, s86, v{vK+r}")
        pr = lambda b: f"v[{b}:{b+1}]"
        for r in range(8):
            a(f"v_pk_mul_f32 {pr(ACC+2*r)}, {pr(KF+2*r)}, {pr(SH+6)}")
        for j in (2, 1, 0):
            for r in range(8):
                a(f"v_pk_fma_f32 {pr(ACC+2*r)}, {pr(KF+2*(r+3-j))}, {pr(SH+2*j)}, {pr(ACC+2*r)}")
        a(f"""
        v_lshrrev_b32 v4, 2, v0
        v_mul_u32_u24 v4, 49152, v4
        v_and_b32 v6, 3, v0
        v_lshl_add_u32 v4, v6, 4, v4
        s_lshl_b32 s84, s{sW}, 6
        s_add_u32 s85, s84, 16384
        s_add_u32 s89, s84, 32768
        v_mov_b32 v{G+3}, s{sT}
        v_mov_b32 v{G+7}, s{sT}
        v_mov_b32 v{G+9}, s{sT}
        v_mov_b32 v{G+11}, s{sT}
        s_waitcnt vmcnt({after})
        """)
        self.stamp(3)
        for r in range(8):
            a(f"v_lshlrev_b32 v{VF+2*(r%4)}, 16, v{vV+r}\nv_and_b32 v{VF+2*(r%4)+1}, s86, v{vV+r}")
            a(f"v_pk_mul_f32 {pr(ACC+2*r)}, {pr(ACC+2*r)}, {pr(VF+2*(r%4))}")
        for c in range(2):
            for d in range(4):
                dst = G + 4 * c + d if d < 3 else G + 8 + 2 * c
                a(f"v_cvt_pk_bf16_f32 v{dst}, v{ACC+2*(7-2*d)+c}, v{ACC+2*(6-2*d)+c}")
        a(f"""
        buffer_store_dwordx4 v[{G}:{G+3}], v4, s[{sWS}:{sWS+3}], s84 offen {self.pub}
        buffer_store_dwordx4 v[{G+4}:{G+7}], v4, s[{sWS}:{sWS+3}], s85 offen {self.pub}
        buffer_store_dwordx4 v[{G+8}:{G+11}], v4, s[{sWS}:{sWS+3}], s89 offen {self.pub}
        """)
        self.stamp(4)

    def p3_pre(self):
        a = self.a
        pr = lambda b: f"v[{b}:{b+1}]"
        T = 200
        a("s_mov_b32 s86, 0xffff0000\ns_mov_b32 s84, 0xbfb8aa3b")
        for h in range(2):
            rows = range(4 * h, 4 * h + 4)
            t = lambda r, k: T + 6 * (r % 4) + k
            for r in rows:
                a(f"v_pk_add_f32 {pr(t(r,0))}, {pr(vX+2*r)}, s[{sST+2*r}:{sST+2*r+1}] op_sel_hi:[1,0] neg_lo:[0,1] neg_hi:[0,1]")
            for r in rows:
                a(f"v_cvt_pk_bf16_f32 v{t(r,2)}, v{t(r,0)}, v{t(r,1)}")
            for r in rows:
                a(f"v_lshlrev_b32 v{t(r,0)}, 16, v{t(r,2)}\nv_and_b32 v{t(r,1)}, s86, v{t(r,2)}")
            for r in rows:
                a(f"v_pk_mul_f32 {pr(t(r,0))}, {pr(t(r,0))}, s[{sST+2*r}:{sST+2*r+1}] op_sel:[0,1] op_sel_hi:[1,1]")
            for r in rows:
                a(f"v_cvt_pk_bf16_f32 v{t(r,2)}, v{t(r,0)}, v{t(r,1)}")
            for r in rows:
                a(f"v_lshlrev_b32 v{t(r,0)}, 16, v{t(r,2)}\nv_and_b32 v{t(r,1)}, s86, v{t(r,2)}")
            for r in rows:
                a(f"v_pk_mul_f32 {pr(t(r,2))}, {pr(t(r,0))}, s[84:85] op_sel_hi:[1,0]")
            for r in rows:
                a(f"v_exp_f32 v{t(r,2)}, v{t(r,2)}\nv_exp_f32 v{t(r,3)}, v{t(r,3)}")
            for r in rows:
                a(f"v_pk_add_f32 {pr(t(r,2))}, {pr(t(r,2))}, 1.0 op_sel_hi:[1,0]")
            for r in rows:
                a(f"v_rcp_f32 v{t(r,2)}, v{t(r,2)}\nv_rcp_f32 v{t(r,3)}, v{t(r,3)}")
            for r in rows:
                a(f"v_pk_mul_f32 {pr(t(r,2))}, {pr(t(r,2))}, {pr(t(r,0))}")
            for r in rows:
                a(f"v_cvt_pk_bf16_f32 v{t(r,4)}, v{t(r,2)}, v{t(r,3)}")
            for r in rows:
                a(f"v_lshlrev_b32 v{t(r,2)}, 16, v{t(r,4)}\nv_and_b32 v{t(r,3)}, s86, v{t(r,4)}")
            for r in rows:
                a(f"v_pk_mul_f32 {pr(vC+2*r)}, {pr(t(r,0))}, {pr(t(r,2))}")

    def poll(self, loads, tags, tmp):
        a = self.a
        L, D = self.lab("poll"), self.lab("polled")
        a(f"s_mov_b32 s95, 0\n{L}:")
        for ld in loads:
            a(ld)
        a("s_waitcnt vmcnt(0)")
        if not self.fused:
            return
        tags = list(tags)
        a(f"v_xor_b32 v{tmp}, s{sT}, v{tags[0]}")
        for t in tags[1:]:
            a(f"v_xor_b32 v{tmp+1}, s{sT}, v{t}\nv_or_b32 v{tmp}, v{tmp}, v{tmp+1}")
        a(f"""
        v_cmp_ne_u32 vcc, 0, v{tmp}
        s_add_u32 s95, s95, 1
        s_cmp_gt_u32 s95, {SPIN}
        s_cbranch_scc1 {D}
        s_cbranch_vccnz {L}
        {D}:
        """)

    def conv(self, p3):
        a = self.a
        ACC = 224 - 32
        SET = [(64, 96), (128, 160)]
        W4 = self.lab("conv_w4")
        a(f"""
        v_mov_b32 v44, 0
        v_mov_b32 v45, 0
        v_mov_b32 v46, 0
        v_mov_b32 v47, 0
        v_lshrrev_b32 v4, 5, v0
        v_mul_u32_u24 v4, {XS}, v4
        v_and_b32 v6, 31, v0
        v_min_u32 v6, 29, v6
        v_lshl_add_u32 v4, v6, 4, v4
        v_cmp_gt_u32 vcc, 128, v0
        s_and_saveexec_b64 s[82:83], vcc
        ds_write_b128 v4, v[44:47] offset:{XB}
        s_mov_b64 exec, s[82:83]
        s_cmp_eq_u32 s{sWAVE}, 4
        s_cbranch_scc1 {W4}
        s_mul_i32 s84, s{sWAVE}, {HC_S}
        s_add_u32 s84, s84, {HC0}
        v_and_b32 v6, 7, v{vLANE}
        v_lshrrev_b32 v4, 1, v6
        v_mul_u32_u24 v4, {HC_K}, v4
        v_and_b32 v6, 1, v6
        v_lshl_add_u32 v4, v6, 4, v4
        v_add_u32 v4, s84, v4
        ds_write_b128 v4, v[44:47]
        v_lshlrev_b32 v4, 4, v{vLANE}
        v_add_u32 v4, s84, v4
        v_cmp_ne_u32 vcc, 0, v{vLANE}
        s_waitcnt vmcnt(3)
        v_cndmask_b32 v{vR+2}, 0, v{vR+2}, vcc
        v_cndmask_b32 v{vR+3}, 0, v{vR+3}, vcc
        """)
        for it in range(4):
            W = vR + 8 * it + 4
            O = 48 + 12 * (it % 2)
            a(f"ds_write_b128 v4, v[{W}:{W+3}] offset:{32 + 1024*it}")
            for d in range(4):
                a(f"v_alignbyte_b32 v{O+d}, v{W+d}, v{W+d-1}, 2")
            for d in range(4):
                a(f"v_mov_b32 v{O+4+d}, v{W+d-1}")
            for d in range(4):
                a(f"v_alignbyte_b32 v{O+8+d}, v{W+d-1}, v{W+d-2}, 2")
            for k in range(1, 4):
                a(f"ds_write_b128 v4, v[{O+4*(k-1)}:{O+4*(k-1)+3}] offset:{k*HC_K + 32 + 1024*it}")
        a(f"""
        s_waitcnt lgkmcnt(0)
        s_lshr_b32 s94, s94, s93
        s_and_b32 s94, s94, 0xffff
        v_lshrrev_b32 v6, 4, v{vLANE}
        v_and_b32 v8, 15, v{vLANE}
        v_lshlrev_b32 v4, 3, v6
        v_add_u32 v4, v4, v8
        v_sub_u32 v4, 15, v4
        v_and_b32 v42, 1, v4
        v_lshlrev_b32 v42, 4, v42
        v_lshlrev_b32 v42, v42, s94
        v_ashrrev_i32 v4, 1, v4
        """)
        for d in range(4):
            a(f"v_cmp_eq_u32 vcc, {d}, v4\nv_cndmask_b32 v{224+d}, 0, v42, vcc")
        a(f"""
        v_add_u32 v4, 1, v8
        v_sub_u32 v42, 0, v4
        v_and_b32 v42, 3, v42
        v_add_u32 v4, v4, v42
        v_lshl_add_u32 v4, v6, 3, v4
        v_mul_u32_u24 v42, {HC_K}, v42
        v_lshl_add_u32 v4, v4, 1, v42
        v_add_u32 v228, s84, v4
        v_lshlrev_b32 v4, 1, v8
        v_sub_u32 v4, v4, v6
        v_add_u32 v4, 31, v4
        s_mul_i32 s84, s{sWAVE}, {XS}
        s_add_u32 s84, s84, {XB}
        v_lshl_add_u32 v229, v4, 4, s84
        {W4}:
        """)
        if p3:
            self.p3_pre()
        G4 = self.lab("conv_g4")
        a(f"""
        s_cmp_eq_u32 s{sWAVE}, 4
        s_cbranch_scc1 {G4}
        s_lshr_b32 s84, s{sIDX}, 1
        s_mul_i32 s84, s84, 49152
        s_and_b32 s85, s{sIDX}, 1
        s_lshl_b32 s86, s85, 14
        s_add_u32 s86, s86, s84
        s_lshl_b32 s85, s85, 3
        s_add_u32 s85, s85, s84
        s_add_u32 s85, s85, 32768
        v_lshlrev_b32 v4, 4, v0
        v_add_u32 v6, s85, v4
        v_add_u32 v4, s86, v4
        s_movk_i32 s84, 0x1000
        s_movk_i32 s85, 0x2000
        s_movk_i32 s86, 0x3000
        """)
        self.stamp(5)
        so = ["0", "s84", "s85", "s86"]
        loads = []
        for k in range(4):
            loads.append(f"buffer_load_dwordx4 v[{64+4*k}:{67+4*k}], v4, s[{sWS}:{sWS+3}], {so[k]} offen {self.get}")
            loads.append(f"buffer_load_dwordx2 v[{80+2*k}:{81+2*k}], v6, s[{sWS}:{sWS+3}], {so[k]} offen {self.get}")
        self.poll(loads, [67 + 4 * k for k in range(4)] + [81 + 2 * k for k in range(4)], 42)
        self.stamp(6)
        a(f"""
        v_and_b32 v4, 3, v0
        v_mul_u32_u24 v4, {XS}, v4
        v_lshrrev_b32 v6, 2, v0
        v_lshl_add_u32 v4, v6, 4, v4
        v_add_u32 v4, {XB + 480}, v4
        """)
        for k in range(4):
            a(f"v_mov_b32 v{67+4*k}, v{80+2*k}")
        for k in range(4):
            a(f"ds_write_b128 v4, v[{64+4*k}:{67+4*k}] offset:{1024*k}")
        a(f"{G4}:\ns_waitcnt lgkmcnt(0)\ns_barrier")
        M4 = self.lab("conv_m4")
        a(f"s_cmp_eq_u32 s{sWAVE}, 4\ns_cbranch_scc1 {M4}")

        def reads(s):
            A, B = SET[s]
            out = []
            for i in range(8):
                out.append(f"ds_read_b128 v[{B+4*(7-i)}:{B+4*(7-i)+3}], v229 offset:{512*(7-i)}")
                out.append(f"ds_read_b64 v[{A+4*i}:{A+4*i+1}], v228 offset:{512*i}")
                out.append(f"ds_read_b64 v[{A+4*i+2}:{A+4*i+3}], v228 offset:{512*i+8}")
            return out

        def mfmas(s):
            A, B = SET[s]
            return [f"v_mfma_f32_16x16x32_bf16 v[{ACC+4*(x+y)}:{ACC+4*(x+y)+3}], v[{A+4*x}:{A+4*x+3}], v[{B+4*y}:{B+4*y+3}], v[{ACC+4*(x+y)}:{ACC+4*(x+y)+3}]"
                    for x in range(8) for y in range(7 - x, -1, -1)]

        rd = reads(0)
        for r in rd[:12]:
            a(r)
        a("s_waitcnt lgkmcnt(3)")
        for r in rd[12:]:
            a(r)
        a("v_add_u32 v228, 64, v228\nv_subrev_u32 v229, 64, v229\ns_mov_b32 s84, 0\ns_waitcnt lgkmcnt(0)")
        for b in range(8):
            a(f"v_mfma_f32_16x16x32_bf16 v[{ACC+4*b}:{ACC+4*b+3}], v[224:227], v[{96+4*b}:{99+4*b}], 0")
        LP = self.lab("conv_loop")
        body = Asm()
        for s in range(2):
            rd, mf = reads(1 - s), mfmas(s)
            for i, m in enumerate(mf):
                body(m)
                if i < 24:
                    body(rd[i])
                if i == 26:
                    body("v_add_u32 v228, 64, v228")
                if i == 27:
                    body("v_subrev_u32 v229, 64, v229")
                if s == 1 and i == 28:
                    body("s_add_u32 s84, s84, 1")
                if s == 1 and i == 29:
                    body("s_cmp_lt_u32 s84, 4")
            body("s_waitcnt lgkmcnt(0)")
        assert hazard.check_loop(body.lines) == 0
        a(f"{LP}:")
        a.lines += body.lines
        a(f"s_cbranch_scc1 {LP}")
        self.stamp(7)
        a(f"""
        v_lshrrev_b32 v6, 4, v{vLANE}
        v_and_b32 v4, 1, v6
        v_lshlrev_b32 v4, 9, v4
        v_lshrrev_b32 v6, 1, v6
        v_lshl_add_u32 v4, v6, 8, v4
        v_and_b32 v6, 15, v{vLANE}
        v_lshl_add_u32 v4, v6, 4, v4
        s_mul_i32 s84, s{sWAVE}, {HC_S + 64}
        v_add_u32 v4, s84, v4
        """)
        for n in range(8):
            a(f"v_cvt_pk_bf16_f32 v{64+2*n}, v{ACC+4*n}, v{ACC+4*n+1}\nv_cvt_pk_bf16_f32 v{65+2*n}, v{ACC+4*n+2}, v{ACC+4*n+3}")
        for m in range(4):
            a(f"v_permlane16_swap_b32 v{64+4*m}, v{66+4*m}\nv_permlane16_swap_b32 v{65+4*m}, v{67+4*m}")
        for m in range(4):
            a(f"ds_write_b128 v4, v[{64+4*m}:{67+4*m}] offset:{HC0 + 1024*m}")
        a(f"{M4}:\ns_waitcnt lgkmcnt(0)\ns_barrier")
        E4 = self.lab("conv_e4")
        a(f"""
        s_cmp_eq_u32 s{sWAVE}, 4
        s_cbranch_scc1 {E4}
        v_and_b32 v8, 3, v0
        v_lshrrev_b32 v6, 2, v0
        v_mul_u32_u24 v4, {HC_S + 64}, v8
        v_lshrrev_b32 v42, 5, v6
        v_lshl_add_u32 v4, v42, 9, v4
        v_and_b32 v42, 1, v6
        v_lshl_add_u32 v4, v42, 8, v4
        v_bfe_u32 v43, v6, 1, 4
        v_lshl_add_u32 v4, v43, 4, v4
        """)
        for k in range(4):
            a(f"ds_read_b128 v[{64+4*k}:{67+4*k}], v4 offset:{HC0 + 1024*k}")
        a(f"""
        v_mul_u32_u24 v4, 10240, v6
        v_lshl_add_u32 v4, v8, 4, v4
        v_lshrrev_b32 v6, 1, v6
        v_mul_u32_u24 v6, 10240, v6
        v_lshl_add_u32 v6, v42, 5, v6
        v_lshl_add_u32 v6, v8, 3, v6
        s_lshr_b32 s84, s{sIDX}, 1
        s_lshl_b32 s84, s84, 6
        s_and_b32 s85, s{sIDX}, 1
        s_mul_i32 s85, s85, 5120
        s_add_u32 s84, s84, s85
        s_add_u32 s84, s84, {YMAIN}
        s_lshl_b32 s85, s{sIDX}, 6
        s_add_u32 s85, s85, {YEXT}
        """)
        for k in range(4):
            a(f"v_mov_b32 v{81+2*k}, s{sT}")
        for k in range(4):
            a(f"""
            s_waitcnt lgkmcnt({3-k})
            v_mov_b32 v{80+2*k}, v{67+4*k}
            v_mov_b32 v{67+4*k}, s{sT}
            buffer_store_dwordx4 v[{64+4*k}:{67+4*k}], v4, s[{sWS}:{sWS+3}], s84 offen {self.pub}
            buffer_store_dwordx2 v[{80+2*k}:{81+2*k}], v6, s[{sWS}:{sWS+3}], s85 offen {self.pub}
            """)
            if k < 3:
                a("s_add_u32 s84, s84, 655360\ns_add_u32 s85, s85, 327680")
        a(f"{E4}:")
        self.stamp(8)

    def rank16(self, v, cnt, tmp):
        a = self.a
        a(f"v_mov_b32 v{cnt}, 0")
        for k in range(1, 16):
            a(f"v_sub_co_u32_dpp v{tmp}, vcc, v{v}, v{v} row_ror:{k} row_mask:0xf bank_mask:0xf\nv_addc_co_u32 v{cnt}, vcc, 0, v{cnt}, vcc")

    def select_init(self):
        self.a(f"""
        v_lshlrev_b32 v4, 2, v{vLANE}
        v_min_u32 v4, {SEL_N - SEL_C}, v4
        v_mov_b32 v6, 0
        ds_write_b32 v4, v6 offset:{SEL_C}
        """)

    def select(self):
        a = self.a
        KY = [44 + 2 * i for i in range(8)]
        W4, RK, MORE, NOMORE, DONE, W4B = (self.lab(x) for x in ("sel_w4", "sel_rank", "sel_more", "sel_nomore", "sel_done", "sel_w4b"))
        a(f"""
        v_mov_b32 v61, 0
        s_cmp_eq_u32 s{sWAVE}, 4
        s_cbranch_scc1 {W4}
        v_lshlrev_b32 v4, 4, v0
        s_mov_b32 s84, {RBOX}
        s_mov_b32 s85, {RBOX + 4096}
        s_mov_b32 s86, {RBOX + 8192}
        s_mov_b32 s89, {RBOX + 12288}
        """)
        so = ["s84", "s85", "s86", "s89"]
        self.poll([f"buffer_load_dwordx4 v[{44+4*k}:{47+4*k}], v4, s[{sWS}:{sWS+3}], {so[k]} offen {self.get}" for k in range(4)],
                  [45 + 2 * i for i in range(8)], 42)
        self.stamp(6)
        a(f"""
        v_max3_u32 v61, v{KY[0]}, v{KY[1]}, v{KY[2]}
        v_max3_u32 v62, v{KY[3]}, v{KY[4]}, v{KY[5]}
        v_max3_u32 v61, v61, v{KY[6]}, v{KY[7]}
        v_lshrrev_b32 v4, 4, v0
        v_max_u32 v61, v61, v62
        v_lshlrev_b32 v4, 2, v4
        v_max_u32_dpp v62, v61, v61 row_ror:8 row_mask:0xf bank_mask:0xf
        v_max_u32_dpp v62, v62, v62 row_ror:4 row_mask:0xf bank_mask:0xf
        v_max_u32_dpp v62, v62, v62 row_ror:2 row_mask:0xf bank_mask:0xf
        v_max_u32_dpp v62, v62, v62 row_ror:1 row_mask:0xf bank_mask:0xf
        s_mov_b32 s84, 0x00010001
        s_mov_b32 exec_lo, s84
        s_mov_b32 exec_hi, s84
        ds_write_b32 v4, v62 offset:{SEL_G}
        s_mov_b64 exec, -1
        {W4}:
        v_and_b32 v8, 15, v{vLANE}
        v_lshlrev_b32 v8, 2, v8
        s_waitcnt lgkmcnt(0)
        s_barrier
        ds_read_b32 v60, v8 offset:{SEL_G}
        v_mov_b32 v6, {SEL_N}
        v_mov_b32 v43, 1
        s_waitcnt lgkmcnt(0)
        {RK}:
        s_cmp_eq_u32 s{sWAVE}, 4
        s_cbranch_scc1 {NOMORE}
        """)
        self.rank16(60, 62, 63)
        a(f"""
        v_cmp_eq_u32 vcc, 8, v62
        v_mov_b32 v63, v61
        s_ff1_i32_b64 s84, vcc
        v_readlane_b32 s85, v60, s84
        {MORE}:
        v_cmp_le_u32 vcc, s85, v63
        s_and_b64 exec, vcc, vcc
        s_cbranch_execz {NOMORE}
        ds_add_rtn_u32 v62, v6, v43
        """)
        for i in range(8):
            a(f"v_cmp_lt_u32 vcc, v{KY[i]}, v63\nv_cndmask_b32 v{45+2*i}, 0, v{KY[i]}, vcc")
        a(f"""
        s_waitcnt lgkmcnt(0)
        v_min_u32 v62, 16, v62
        v_lshlrev_b32 v62, 2, v62
        ds_write_b32 v62, v63 offset:{SEL_C}
        v_max3_u32 v63, v45, v47, v49
        v_max3_u32 v63, v63, v51, v53
        v_max3_u32 v63, v63, v55, v57
        v_max_u32 v63, v63, v59
        s_branch {MORE}
        {NOMORE}:
        s_mov_b64 exec, -1
        s_waitcnt lgkmcnt(0)
        s_barrier
        ds_read_b32 v62, v6
        ds_read_b32 v60, v8 offset:{SEL_C}
        s_waitcnt lgkmcnt(0)
        v_readfirstlane_b32 s84, v62
        s_cmp_le_u32 s84, 16
        s_cbranch_scc1 {DONE}
        s_barrier
        """)
        self.select_init()
        a(f"""
        v_mov_b32 v6, {SEL_N}
        s_waitcnt lgkmcnt(0)
        s_barrier
        s_branch {RK}
        {DONE}:
        """)

    def silu(self, x, t):
        self.a(f"""
        v_mul_f32 v{t}, s84, v{x}
        v_exp_f32 v{t}, v{t}
        v_add_f32 v{t}, 1.0, v{t}
        v_rcp_f32 v{t}, v{t}
        v_mul_f32 v{x}, v{x}, v{t}
        """)

    def rnd(self, regs, t):
        for i in range(0, len(regs), 2):
            self.a(f"v_cvt_pk_bf16_f32 v{t}, v{regs[i]}, v{regs[i+1]}\nv_lshlrev_b32 v{regs[i]}, 16, v{t}\nv_and_b32 v{regs[i+1]}, s86, v{t}")

    def ffn1(self):
        a = self.a
        FR, CS, AC, QF = 128, 192, 208, 64
        self.select_init()
        a(f"""
        v_lshrrev_b32 v4, 2, v0
        v_bfe_u32 v6, v0, 5, 1
        v_lshlrev_b32 v6, 1, v6
        v_and_b32 v8, 3, v0
        v_xor_b32 v6, v6, v8
        v_lshlrev_b32 v4, 6, v4
        v_lshl_add_u32 v4, v6, 4, v4
        v_add_u32 v6, 40960, v4
        s_waitcnt vmcnt(0)
        """)
        for i in range(8):
            a(f"ds_write_b128 v4, v[{vR+4*i}:{vR+4*i+3}] offset:{BIG + 5120*i}\nds_write_b128 v6, v[{vR+32+4*i}:{vR+32+4*i+3}] offset:{BIG + 5120*i}")
        a(f"""
        v_lshrrev_b32 v6, 4, v{vLANE}
        v_bfe_u32 v4, v{vLANE}, 2, 2
        v_lshl_add_u32 v4, v6, 3, v4
        v_lshlrev_b32 v4, 6, v4
        v_and_b32 v8, 3, v{vLANE}
        v_lshl_add_u32 v4, v8, 3, v4
        v_and_b32 v6, 1, v6
        v_lshl_add_u32 v4, v6, 5, v4
        s_lshl_b32 s84, s{sWAVE}, 13
        v_add_u32 v4, s84, v4
        v_xor_b32 v6, 32, v4
        v_mov_b32 v44, 0x3f803f80
        v_mov_b32 v45, 0x3f803f80
        v_mov_b32 v46, 0x3f803f80
        v_mov_b32 v47, 0x3f803f80
        s_waitcnt lgkmcnt(0)
        s_barrier
        """)
        fr = lambda s, m, t: FR + 16 * s + 8 * m + 4 * t
        for s in range(4):
            for m in range(2):
                for t in range(2):
                    for hh in range(2):
                        a(f"ds_read_b64_tr_b16 v[{fr(s,m,t)+2*hh}:{fr(s,m,t)+2*hh+1}], v{(4,6)[t]} offset:{BIG + 40960*m + 2048*s + 256*hh}")
            a("s_waitcnt lgkmcnt(0)")
            for m in range(2):
                for t in range(2):
                    c = CS + 8 * m + 4 * t
                    a(f"v_mfma_f32_16x16x32_bf16 v[{c}:{c+3}], v[{fr(s,m,t)}:{fr(s,m,t)+3}], v[44:47], " + ("0" if s == 0 else f"v[{c}:{c+3}]"))
        self.stamp(5)
        self.select()
        self.stamp(7)
        a(f"""
        v_and_b32 v4, 2047, v60
        v_sub_u32 v61, 2047, v4
        v_mul_u32_u24 v4, 1280, v61
        v_lshrrev_b32 v6, 4, v{vLANE}
        v_lshl_add_u32 v4, v6, 4, v4
        s_lshl_b32 s84, s{sWAVE}, 8
        """)
        for s in range(4):
            a(f"buffer_load_dwordx4 v[{QF+4*s}:{QF+4*s+3}], v4, s[{sQ}:{sQ+3}], s84 offen offset:{64*s}")
        a(f"v_lshlrev_b32 v42, 4, v61\ns_mov_b32 s89, {STBOX}")
        a(f"buffer_load_dwordx4 v[80:83], v42, s[{sWS}:{sWS+3}], s89 offen {self.get}")
        self.rank16(60, 62, 63)
        a(f"""
        v_sub_u32 v62, 15, v62
        v_lshlrev_b32 v62, 4, v62
        v_and_b32 v84, 15, v{vLANE}
        s_waitcnt vmcnt(0)
        """)
        if self.fused:
            OK = self.lab("st_ok")
            a(f"v_cmp_ne_u32 vcc, s{sT}, v83\ns_cbranch_vccz {OK}")
            self.poll([f"buffer_load_dwordx4 v[80:83], v42, s[{sWS}:{sWS+3}], s89 offen {self.get}"], [83], 44)
            a(f"{OK}:")
        for s in range(4):
            for m in range(2):
                for t in range(2):
                    c = AC + 8 * m + 4 * t
                    a(f"v_mfma_f32_16x16x32_bf16 v[{c}:{c+3}], v[{fr(s,m,t)}:{fr(s,m,t)+3}], v[{QF+4*s}:{QF+4*s+3}], " + ("0" if s == 0 else f"v[{c}:{c+3}]"))
        a(f"""
        v_mov_b32 v85, v81
        v_mov_b32 v86, v61
        v_mov_b32 v87, 0
        ds_write_b128 v62, v[84:87] offset:{SEL_T}
        s_lshl_b32 s84, s{sWAVE}, 12
        v_lshlrev_b32 v4, 4, v{vLANE}
        v_add_u32 v4, s84, v4
        """)
        for i in range(16):
            a(f"v_fma_f32 v{AC+i}, -v80, v{CS+i}, v{AC+i}")
        for q in range(4):
            a(f"ds_write_b128 v4, v[{AC+4*q}:{AC+4*q+3}] offset:{BIG + 1024*q}")
        FIN = self.lab("ffn1_done")
        a(f"""
        v_and_b32 v4, 15, v{vLANE}
        v_lshlrev_b32 v4, 4, v4
        s_waitcnt lgkmcnt(0)
        s_barrier
        s_cmp_ge_u32 s{sWAVE}, 2
        s_cbranch_scc1 {FIN}
        ds_read_b128 v[84:87], v4 offset:{SEL_T}
        v_and_b32 v6, 48, v{vLANE}
        s_lshl_b32 s84, s{sWAVE}, 10
        s_mov_b32 s86, 0xffff0000
        s_waitcnt lgkmcnt(0)
        v_and_b32 v84, 15, v84
        v_add_u32 v6, v6, v84
        v_lshl_add_u32 v6, v6, 4, s84
        """)
        for wv in range(5):
            a(f"ds_read_b128 v[{128+8*wv}:{131+8*wv}], v6 offset:{BIG + 4096*wv}\nds_read_b128 v[{132+8*wv}:{135+8*wv}], v6 offset:{BIG + 4096*wv+2048}")
        a(f"""
        s_lshl_b32 s85, s{sIDX}, 1
        s_add_u32 s85, s85, s{sWAVE}
        s_lshl_b32 s85, s85, 9
        s_add_u32 s85, s85, {HBOX}
        v_lshrrev_b32 v6, 4, v{vLANE}
        v_lshl_add_u32 v4, v6, 7, v4
        v_mov_b32 v46, s{sT}
        v_mov_b32 v47, s{sT}
        s_mov_b32 s84, 0xbfb8aa3b
        s_waitcnt lgkmcnt(0)
        """)
        pr = lambda b: f"v[{b}:{b+1}]"
        for i in range(0, 8, 2):
            a(f"v_pk_add_f32 {pr(128+i)}, {pr(128+i)}, {pr(136+i)}\nv_pk_add_f32 {pr(144+i)}, {pr(144+i)}, {pr(152+i)}")
        for i in range(0, 8, 2):
            a(f"v_pk_add_f32 {pr(128+i)}, {pr(128+i)}, {pr(160+i)}")
        for i in range(0, 8, 2):
            a(f"v_pk_add_f32 {pr(128+i)}, {pr(128+i)}, {pr(144+i)}")
        for i in range(8):
            a(f"v_mul_f32 v{128+i}, v{128+i}, v85")
        self.rnd(list(range(128, 136)), 42)
        for i in range(4):
            self.silu(128 + i, 136 + i)
        self.rnd(list(range(128, 132)), 42)
        for i in range(4):
            a(f"v_mul_f32 v{128+i}, v{128+i}, v{132+i}")
        NI = self.lab("noidx")
        a(f"""
        v_cvt_pk_bf16_f32 v44, v128, v129
        v_cvt_pk_bf16_f32 v45, v130, v131
        s_mov_b32 s82, 0x00ff00ff
        s_mov_b32 exec_lo, s82
        s_mov_b32 exec_hi, s82
        buffer_store_dwordx4 v[44:47], v4, s[{sWS}:{sWS+3}], s85 offen {self.pub}
        s_cmp_lg_u32 s85, {HBOX}
        s_cbranch_scc1 {NI}
        s_mov_b64 exec, 0xff
        v_mov_b32 v87, s{sT}
        v_lshlrev_b32 v4, 3, v{vLANE}
        s_mov_b32 s85, {IDXBOX}
        buffer_store_dwordx2 v[86:87], v4, s[{sWS}:{sWS+3}], s85 offen {self.pub}
        """)
        if self.fused:
            a(f"s_mov_b64 exec, 1\nv_mov_b32 v4, {EPOCH}\nbuffer_store_dword v87, v4, s[{sWS}:{sWS+3}], 0 offen sc1")
        a(f"{NI}:\ns_mov_b64 exec, -1\n{FIN}:")
        self.stamp(8)

    def ffn2(self, p3):
        a = self.a
        FR, HB = 128, 64
        self.select_init()
        a(f"v_lshlrev_b32 v4, 4, v0\ns_waitcnt vmcnt(0)")
        for i in range(10):
            a(f"ds_write_b128 v4, v[{vR+4*i}:{vR+4*i+3}] offset:{BIG + 5120*i}")
        a(f"""
        s_min_u32 s84, s{sWAVE}, 3
        s_mul_i32 s84, s84, 12288
        v_lshlrev_b32 v4, 3, v{vLANE}
        v_add_u32 v4, s84, v4
        s_waitcnt lgkmcnt(0)
        s_barrier
        """)
        for n in range(24):
            a(f"ds_read_b64_tr_b16 v[{FR+2*n}:{FR+2*n+1}], v4 offset:{BIG + 512*n}")
            if n % 12 == 11:
                a("s_waitcnt lgkmcnt(0)")
        if p3:
            self.p3_pre()
        self.stamp(5)
        self.select()
        self.rank16(60, 62, 63)
        a(f"""
        v_sub_u32 v62, 15, v62
        v_lshlrev_b32 v62, 4, v62
        ds_write_b32 v62, v60 offset:{SEL_T}
        v_and_b32 v4, 7, v{vLANE}
        v_lshlrev_b32 v4, 4, v4
        s_waitcnt lgkmcnt(0)
        ds_read_b32 v60, v4 offset:{SEL_T}
        s_waitcnt lgkmcnt(0)
        """)
        self.stamp(7)
        W4, NOTW, FIN = self.lab("ffn2_w4"), self.lab("ffn2_notw"), self.lab("ffn2_done")
        a(f"""
        s_cmp_eq_u32 s{sWAVE}, 4
        s_cbranch_scc1 {W4}
        v_lshrrev_b32 v6, 4, v{vLANE}
        v_lshl_add_u32 v4, v6, 7, v4
        v_bfe_u32 v6, v{vLANE}, 3, 1
        v_lshl_add_u32 v4, v6, 9, v4
        s_mul_i32 s84, s{sWAVE}, 12288
        s_add_u32 s84, s84, {HBOX}
        s_add_u32 s85, s84, 4096
        s_add_u32 s86, s84, 8192
        """)
        self.poll([f"buffer_load_dwordx3 v[{HB+4*m}:{HB+4*m+2}], v4, s[{sWS}:{sWS+3}], s{84 + m // 4} offen offset:{1024*(m%4)} {self.get}" for m in range(12)],
                  [HB + 4 * m + 2 for m in range(12)], 42)
        for m in range(12):
            for hi in range(2):
                c = 112 + 4 * hi
                n = 2 * m + hi
                a(f"v_mfma_f32_16x16x16_bf16 v[{c}:{c+3}], v[{FR+2*n}:{FR+2*n+1}], v[{HB+4*m}:{HB+4*m+1}], " + ("0" if m == 0 else f"v[{c}:{c+3}]"))
        a(f"s_lshl_b32 s84, s{sWAVE}, 10\nv_lshlrev_b32 v4, 4, v{vLANE}\nv_add_u32 v4, s84, v4")
        for i in range(4):
            a(f"v_add_f32_dpp v{112+i}, v{116+i}, v{112+i} row_ror:8 row_mask:0xf bank_mask:0xf")
        a(f"""
        ds_write_b128 v4, v[112:115] offset:{BIG}
        s_branch {NOTW}
        {W4}:
        v_and_b32 v4, 2047, v60
        v_sub_u32 v61, 2047, v4
        v_lshrrev_b32 v6, 4, v{vLANE}
        v_mul_u32_u24 v62, 1280, v61
        v_lshl_add_u32 v62, v6, 3, v62
        s_lshl_b32 s84, s{sIDX}, 5
        v_add_u32 v62, s84, v62
        buffer_load_dwordx2 v[120:121], v62, s[{sQ}:{sQ+3}], 0 offen
        v_lshlrev_b32 v42, 4, v61
        s_mov_b32 s89, {STBOX}
        """)
        self.poll([f"buffer_load_dwordx4 v[80:83], v42, s[{sWS}:{sWS+3}], s89 offen {self.get}"], [83], 44)
        a(f"""
        {NOTW}:
        s_waitcnt lgkmcnt(0)
        s_barrier
        s_cmp_lg_u32 s{sWAVE}, 4
        s_cbranch_scc1 {FIN}
        v_lshlrev_b32 v4, 4, v{vLANE}
        """)
        for wv in range(4):
            a(f"ds_read_b128 v[{128+4*wv}:{131+4*wv}], v4 offset:{BIG + 1024*wv}")
        a(f"""
        s_mov_b32 s86, 0xffff0000
        s_mov_b32 s84, 0xbfb8aa3b
        v_mul_f32 v42, s84, v82
        v_exp_f32 v42, v42
        v_lshlrev_b32 v116, 16, v120
        v_and_b32 v117, s86, v120
        v_add_f32 v42, 1.0, v42
        v_rcp_f32 v42, v42
        v_lshlrev_b32 v118, 16, v121
        v_and_b32 v119, s86, v121
        v_cvt_pk_bf16_f32 v42, v42, v42
        v_and_b32 v82, s86, v42
        """)
        for i in range(4):
            a(f"v_sub_f32 v{112+i}, v{116+i}, v80")
        self.rnd([112, 113, 114, 115], 42)
        for i in range(4):
            a(f"v_mul_f32 v{112+i}, v{112+i}, v81")
        self.rnd([112, 113, 114, 115], 42)
        a("s_waitcnt lgkmcnt(0)")
        for i in range(4):
            a(f"v_add_f32 v{128+i}, v{128+i}, v{132+i}\nv_add_f32 v{136+i}, v{136+i}, v{140+i}")
        for i in range(4):
            a(f"v_add_f32 v{128+i}, v{128+i}, v{136+i}")
        self.rnd([128, 129, 130, 131], 42)
        for i in range(4):
            a(f"v_mul_f32 v{128+i}, v{128+i}, v82")
        self.rnd([128, 129, 130, 131], 42)
        for i in range(4):
            a(f"v_add_f32 v{128+i}, v{128+i}, v{112+i}")
        self.rnd([128, 129, 130, 131], 42)
        for i in range(4):
            self.silu(128 + i, 132 + i)
        self.rnd([128, 129, 130, 131], 42)
        a(f"""
        v_lshrrev_b32 v4, 3, v61
        v_mul_u32_u24 v43, 10240, v4
        v_lshl_add_u32 v43, v6, 5, v43
        s_lshl_b32 s84, s{sIDX}, 7
        s_add_u32 s84, s84, {YMAIN}
        s_add_u32 s85, s84, 5120
        v_and_b32 v8, 1, v4
        v_lshrrev_b32 v4, 1, v4
        v_mul_u32_u24 v4, 10240, v4
        v_lshl_add_u32 v4, v8, 5, v4
        v_lshrrev_b32 v8, 1, v6
        v_lshl_add_u32 v4, v8, 7, v4
        v_and_b32 v8, 1, v6
        v_lshl_add_u32 v4, v8, 4, v4
        s_lshl_b32 s89, s{sIDX}, 8
        s_add_u32 s89, s89, {YEXT}
        """)
        loads = []
        for i in range(4):
            loads.append(f"buffer_load_dwordx4 v[{136+4*i}:{139+4*i}], v43, s[{sWS}:{sWS+3}], s{84 + (i & 1)} offen offset:{16*(i>>1)} {self.get}")
            loads.append(f"buffer_load_dwordx2 v[{152+2*i}:{153+2*i}], v4, s[{sWS}:{sWS+3}], s89 offen offset:{64*(i&1) + 8*(i>>1)} {self.get}")
        self.poll(loads, [139 + 4 * i for i in range(4)] + [153 + 2 * i for i in range(4)], 44)
        a(f"""
        v_bfe_u32 v4, v61, 1, 2
        v_cmp_eq_u32 s[82:83], 1, v4
        v_cmp_eq_u32 s[84:85], 2, v4
        v_cmp_eq_u32 s[88:89], 3, v4
        v_and_b32 v4, 1, v61
        v_lshlrev_b32 v4, 4, v4
        v_sub_u32 v4, 16, v4
        """)
        for i in range(4):
            y = 136 + 4 * i
            a(f"""
            v_cndmask_b32 v{y}, v{y}, v{y+1}, s[82:83]
            v_cndmask_b32 v{y}, v{y}, v{y+2}, s[84:85]
            v_cndmask_b32 v{y}, v{y}, v{152+2*i}, s[88:89]
            v_lshlrev_b32 v{y}, v4, v{y}
            v_and_b32 v{y}, s86, v{y}
            v_mul_f32 v{112+i}, v{112+i}, v{y}
            """)
        self.rnd([112, 113, 114, 115], 42)
        for i in range(4):
            a(f"v_mul_f32 v{112+i}, v{112+i}, v{128+i}")
        self.rnd([112, 113, 114, 115], 42)
        for i in range(4):
            a(f"v_add_f32 v{112+i}, v{112+i}, v{116+i}")
        srd(a, sOUT, 26, 2621440)
        a(f"""
        v_cvt_pk_bf16_f32 v112, v112, v113
        v_cvt_pk_bf16_f32 v113, v114, v115
        s_mov_b32 s82, 0x00ff00ff
        s_mov_b32 exec_lo, s82
        s_mov_b32 exec_hi, s82
        buffer_store_dwordx2 v[112:113], v62, s[{sOUT}:{sOUT+3}], 0 offen
        s_mov_b64 exec, -1
        {FIN}:
        """)
        self.stamp(8)

    def p3(self):
        a = self.a
        srd(a, sOUT, 26, 2621440)
        a(f"v_and_b32 v4, 7, v{vLANE}\nv_lshlrev_b32 v4, 3, v4\ns_mov_b32 s84, {IDXBOX}")
        self.poll([f"buffer_load_dwordx2 v[44:45], v4, s[{sWS}:{sWS+3}], s84 offen {self.get}"], [45], 42)
        a(f"""
        v_lshrrev_b32 v4, 3, v44
        v_and_b32 v6, 7, v44
        v_lshlrev_b32 v6, v6, 1
        v_cmp_eq_u32 vcc, s{sW}, v4
        v_cndmask_b32 v6, 0, v6, vcc
        v_or_b32_dpp v6, v6, v6 row_half_mirror row_mask:0xf bank_mask:0xf
        v_or_b32_dpp v6, v6, v6 quad_perm:[1,0,3,2] row_mask:0xf bank_mask:0xf
        v_or_b32_dpp v6, v6, v6 quad_perm:[2,3,0,1] row_mask:0xf bank_mask:0xf
        v_readfirstlane_b32 s{sSKIP}, v6
        v_lshlrev_b32 v4, 4, v0
        v_lshrrev_b32 v6, 2, v0
        v_lshlrev_b32 v6, 7, v6
        v_and_b32 v8, 3, v0
        v_lshl_add_u32 v6, v8, 3, v6
        s_mul_i32 s87, s{sW}, 10240
        s_add_u32 s88, s87, 5120
        s_add_u32 s84, s87, {YMAIN}
        s_add_u32 s85, s88, {YMAIN}
        s_lshr_b32 s89, s{sW}, 1
        s_mul_i32 s89, s89, 10240
        s_and_b32 s86, s{sW}, 1
        s_lshl_b32 s86, s86, 5
        s_add_u32 s89, s89, s86
        s_add_u32 s89, s89, {YEXT}
        s_mov_b32 s86, 0xffff0000
        """)
        self.stamp(9)
        self.poll([f"buffer_load_dwordx4 v[44:47], v4, s[{sWS}:{sWS+3}], s84 offen {self.get}",
                   f"buffer_load_dwordx4 v[48:51], v4, s[{sWS}:{sWS+3}], s85 offen {self.get}",
                   f"buffer_load_dwordx2 v[52:53], v6, s[{sWS}:{sWS+3}], s89 offen {self.get}",
                   f"buffer_load_dwordx2 v[54:55], v6, s[{sWS}:{sWS+3}], s89 offen offset:64 {self.get}"],
                  [47, 51, 53, 55], 42)
        self.stamp(10)
        pr = lambda b: f"v[{b}:{b+1}]"
        for r in range(8):
            d = r // 2
            ya, yb = (44 + d, 48 + d) if d < 3 else (52, 54)
            t = 56 + 2 * r
            if r % 2 == 0:
                a(f"v_lshlrev_b32 v{t}, 16, v{ya}\nv_lshlrev_b32 v{t+1}, 16, v{yb}")
            else:
                a(f"v_and_b32 v{t}, s86, v{ya}\nv_and_b32 v{t+1}, s86, v{yb}")
            L = self.lab("skip")
            a(f"""
            v_pk_fma_f32 {pr(t)}, {pr(t)}, {pr(vC+2*r)}, {pr(vX+2*r)}
            s_bitcmp1_b32 s{sSKIP}, {r}
            v_cvt_pk_bf16_f32 v{t}, v{t}, v{t+1}
            s_cbranch_scc1 {L}
            buffer_store_dword v{t}, v5, s[{sOUT}:{sOUT+3}], s{87 + r // 4} offen offset:{(r % 4) * 1280} nt
            {L}:
            """)
        self.stamp(11)

    def reload_rows(self):
        a = self.a
        a(f"""
        v_and_b32 v6, 7, v{vLANE}
        s_lshl_b32 s85, s{sW}, 3
        v_add_u32 v6, s85, v6
        v_lshlrev_b32 v6, 4, v6
        s_mov_b32 s85, {STBOX}
        buffer_load_dwordx4 v[100:103], v6, s[{sWS}:{sWS+3}], s85 offen
        s_mov_b32 s86, 0xffff0000
        s_mov_b32 s{sT}, 0x1234567
        s_waitcnt vmcnt(0)
        """)
        for r in range(8):
            a(f"v_lshlrev_b32 v{vX+2*r}, 16, v{vQ+r}\nv_and_b32 v{vX+2*r+1}, s86, v{vQ+r}")
        for r in range(8):
            a(f"v_readlane_b32 s{sST+2*r}, v100, {r}\nv_readlane_b32 s{sST+2*r+1}, v101, {r}")

    def finish(self, end, code_end):
        self.stamps_out()
        self.a(f"{end}:\ns_endpgm\n{code_end}:")
        lines, _ = hazard.fix(self.a.lines)
        self.a = Asm()
        return "\n".join(lines) + "\n"

    def fused_kernel(self):
        a = self.a
        self.prologue("L_end", "L_code_end")
        self.load_q()
        self.load_kv()
        self.role_loads((1, 2, 3))
        self.stats(20 + NROLE)
        self.kv(NROLE)
        c2, c3, c0, p3 = "L_c2", "L_c3", "L_c0", "L_p3"
        a(f"s_cmp_lg_u32 s{sCLS}, 1\ns_cbranch_scc1 {c2}")
        self.conv(True)
        a(f"s_branch {p3}\n{c2}:\ns_cmp_lg_u32 s{sCLS}, 2\ns_cbranch_scc1 {c3}")
        self.ffn1()
        a(f"s_branch {c0}\n{c3}:\ns_cmp_lg_u32 s{sCLS}, 3\ns_cbranch_scc1 {c0}")
        self.ffn2(True)
        a(f"s_branch {p3}\n{c0}:")
        self.p3_pre()
        a(f"{p3}:")
        self.p3()
        return self.finish("L_end", "L_code_end")

    def k1(self):
        self.prologue("L_end1", "L_code_end1")
        self.load_q()
        self.load_kv()
        self.stats(20)
        self.kv(0)
        return self.finish("L_end1", "L_code_end1")

    def k2(self):
        a = self.a
        self.prologue("L_end2", "L_code_end2")
        self.role_loads((1, 2))
        a(f"s_mov_b32 s{sT}, 0x1234567\ns_waitcnt vmcnt(0)\ns_cmp_lg_u32 s{sCLS}, 1\ns_cbranch_scc1 L_k2b")
        self.conv(False)
        a(f"s_branch L_k2e\nL_k2b:\ns_cmp_lg_u32 s{sCLS}, 2\ns_cbranch_scc1 L_k2e")
        self.ffn1()
        a("L_k2e:")
        return self.finish("L_end2", "L_code_end2")

    def k3(self):
        a = self.a
        self.prologue("L_end3", "L_code_end3")
        self.load_q()
        self.role_loads((3,))
        self.reload_rows()
        a(f"s_cmp_lg_u32 s{sCLS}, 3\ns_cbranch_scc1 L_k3b")
        self.ffn2(True)
        a("s_branch L_k3c\nL_k3b:")
        self.p3_pre()
        a("L_k3c:")
        self.p3()
        return self.finish("L_end3", "L_code_end3")


TARGET = '.amdgcn_target "amdgcn-amd-amdhsa--gfx950"\n'


def emit_fused(**kw):
    g = Gen(True, **kw)
    return (f"; @launch grid=(256,1,1) block=(320,1,1) lds={LDS_BYTES}\n" + TARGET
            + kernel_block(KNAME + "_kernel", g.fused_kernel(), 256))


def emit_multi(empties=0, **kw):
    g = Gen(False, **kw)
    head = "".join(f"; @launch kernel={k}_kernel grid=(256,1,1) block=(320,1,1) lds={LDS_BYTES}\n" for k in ("rows", "mix", "fin"))
    head += "; @launch kernel=nop_kernel grid=(256,1,1) block=(64,1,1) lds=0\n" * empties
    text = head + TARGET + kernel_block("rows_kernel", g.k1(), 256) + kernel_block("mix_kernel", g.k2(), 256) + kernel_block("fin_kernel", g.k3(), 256)
    if empties:
        text += kernel_block("nop_kernel", "    s_endpgm\n", 8)
    return text


if __name__ == "__main__":
    open("multi.s", "w").write(emit_multi())
    open("multi_e2.s", "w").write(emit_multi(empties=2))
    open("fused.s", "w").write(emit_fused())
    open("fused_st.s", "w").write(emit_fused(stamps=True))
```

```python
import sys
from gen import Asm, kernel_block, KNAME
import hazard

KV = 0x000000
YMAIN = 0x400000
YEXT = 0x700000
RBOX = 0x880000
STBOX = 0x890000
HBOX = 0x8A0000
IDXBOX = 0x8B0000
EPOCH = 0x8B1000
STAMPS = 0x900000
WS_USED = 0xA00000

HC_K = 4160
HC_S = 4 * HC_K
RED = 0
SEL = 640
SEL_G = SEL
SEL_C = SEL + 64
SEL_N = SEL + 64 + 80
SEL_T = SEL + 64 + 96
BIG = 1280
XB = BIG
XS = 4576
HC0 = 19712
LDS_BYTES = HC0 + 4 * HC_S + 1024

vTID, vLANE = 0, 1
vX, vC = 10, 26
vQ, vK, vV, vWR, vSH = 42, 50, 61, 69, 70
vR = 128
sQ, sKK, sVV, sOUT, sWS, sRA, sRB = 32, 36, 40, 44, 48, 52, 56
sW, sWAVE, sT, sIDX, sCLS = 60, 61, 62, 63, 64
sST = 66
sSKIP = 65
NROLE = 16
SPIN = 400000


def srd(a, s, lo, size):
    a(f"s_mov_b32 s{s}, s{lo}\ns_mov_b32 s{s+1}, s{lo+1}\ns_mov_b32 s{s+2}, {size}\ns_mov_b32 s{s+3}, 0x20000")


class Gen:
    def __init__(self, fused=True, stamps=False, ld="nt", hold=0):
        self.hold = hold
        self.fused, self.stamps, self.ld = fused, stamps, ld
        self.a = Asm()
        self.uid = 0
        self.pub = "sc1" if fused else ""
        self.get = "sc1" if fused else ""

    def lab(self, base):
        self.uid += 1
        return f"L_{base}_{self.uid}"

    def stamp(self, i):
        if self.stamps:
            self.a(f"s_memrealtime s[96:97]\ns_waitcnt lgkmcnt(0)\nv_writelane_b32 v254, s96, {i}")

    def stamps_out(self):
        if self.stamps:
            L = self.lab("nost")
            self.a(f"""
            s_cmp_lg_u32 s{sWAVE}, 0
            s_cbranch_scc1 {L}
            s_lshl_b32 s96, s{sW}, 8
            s_add_u32 s96, s96, {STAMPS}
            v_lshlrev_b32 v253, 2, v{vLANE}
            buffer_store_dword v254, v253, s[{sWS}:{sWS+3}], s96 offen
            {L}:
            """)

    def prologue(self, end, code_end):
        a = self.a
        L = self.lab("pc")
        a(f"""
        s_cmp_ge_u32 s2, 256
        s_cbranch_scc1 {end}
        {"s_memrealtime s[98:99]" if self.hold else ""}
        {"s_memtime s[100:101]" if self.stamps else ""}
        s_load_dwordx16 s[4:19], s[0:1], 0
        s_load_dwordx8 s[20:27], s[0:1], 64
        s_load_dwordx4 s[28:31], s[0:1], 96
        s_getpc_b64 s[82:83]
        {L}:
        v_lshlrev_b32 v2, 7, v0
        v_min_u32 v2, {code_end}-{L}-4, v2
        global_load_dword v3, v2, s[82:83]
        v_lshrrev_b32 v4, 6, v0
        v_and_b32 v{vLANE}, 63, v0
        v_lshlrev_b32 v5, 2, v0
        v_readfirstlane_b32 s{sWAVE}, v4
        s_mov_b32 s{sW}, s2
        s_and_b32 s84, s2, 7
        s_lshr_b32 s85, s2, 3
        s_mul_i32 s86, s84, 20
        s_add_u32 s{sIDX}, s86, s85
        s_mov_b32 s{sCLS}, 1
        s_mul_i32 s86, s84, 6
        s_add_u32 s86, s86, s85
        s_sub_u32 s86, s86, 20
        s_cmp_ge_u32 s85, 20
        s_cselect_b32 s{sIDX}, s86, s{sIDX}
        s_cselect_b32 s{sCLS}, 2, s{sCLS}
        s_mul_i32 s86, s84, 5
        s_add_u32 s86, s86, s85
        s_sub_u32 s86, s86, 26
        s_cmp_ge_u32 s85, 26
        s_cselect_b32 s{sIDX}, s86, s{sIDX}
        s_cselect_b32 s{sCLS}, 3, s{sCLS}
        s_cmp_ge_u32 s85, 31
        s_cselect_b32 s{sCLS}, 0, s{sCLS}
        s_mul_i32 s87, s2, 10240
        s_add_u32 s88, s87, 5120
        """)
        if self.stamps:
            a("v_mov_b32 v254, 0")
            self.stamp(0)
        a("s_waitcnt lgkmcnt(0)")
        srd(a, sQ, 4, 2621440)
        srd(a, sWS, 30, WS_USED)
        if self.fused:
            a(f"v_mov_b32 v6, {EPOCH}\nbuffer_load_dword v7, v6, s[{sWS}:{sWS+3}], 0 offen sc1")

    def load_q(self):
        a = self.a
        for r in range(8):
            a(f"buffer_load_dword v{vQ+r}, v5, s[{sQ}:{sQ+3}], s{87 + r // 4} offen offset:{(r % 4) * 1280} {self.ld}")

    def load_kv(self):
        a = self.a
        srd(a, sKK, 6, 2621440)
        srd(a, sVV, 8, 2621440)
        a(f"""
        global_load_dword v{vWR}, v5, s[18:19]
        s_sub_u32 s89, s87, 3840
        s_cmp_eq_u32 s{sW}, 0
        s_cselect_b32 s89, 0, s89
        s_cselect_b32 s90, 0, -1
        v_lshlrev_b32 v6, 4, v0
        global_load_dwordx4 v[{vSH}:{vSH+3}], v6, s[10:11]
        """)
        for r in range(3):
            a(f"buffer_load_dword v{vK+r}, v5, s[{sKK}:{sKK+3}], s89 offen offset:{r * 1280} {self.ld}")
        for r in range(8):
            a(f"buffer_load_dword v{vK+3+r}, v5, s[{sKK}:{sKK+3}], s{87 + r // 4} offen offset:{(r % 4) * 1280} {self.ld}")
        for r in range(8):
            a(f"buffer_load_dword v{vV+r}, v5, s[{sVV}:{sVV+3}], s{87 + r // 4} offen offset:{(r % 4) * 1280} {self.ld}")

    def role_loads(self, classes):
        a = self.a
        done = self.lab("rl_done")
        ld = self.ld

        def dummies(n):
            for _ in range(n):
                a(f"buffer_load_dword v9, v5, s[{sRB}:{sRB+3}], 0 offen")

        nxt = self.lab("rl")
        srd(a, sRB, 12, 0)
        if 1 in classes:
            a(f"""
            s_cmp_lg_u32 s{sCLS}, 1
            s_cbranch_scc1 {nxt}
            s_cmp_eq_u32 s{sWAVE}, 4
            s_cbranch_scc1 {nxt}
            s_lshr_b32 s91, s{sIDX}, 1
            s_lshl_b32 s91, s91, 3
            s_and_b32 s92, s{sIDX}, 1
            s_add_u32 s91, s91, s92
            s_lshl_b32 s92, s{sWAVE}, 1
            s_add_u32 s91, s91, s92
            s_lshl_b32 s92, s91, 1
            s_and_b32 s93, s92, 2
            s_lshl_b32 s93, s93, 3
            s_andn2_b32 s92, s92, 3
            s_load_dword s94, s[14:15], s92
            s_lshl_b32 s91, s91, 12
            """)
            srd(a, sRA, 12, 2621440)
            a(f"""
            v_lshlrev_b32 v6, 4, v{vLANE}
            v_add_u32 v6, s91, v6
            v_subrev_u32 v8, 8, v6
            v_max_i32 v4, 0, v8
            """)
            for it in range(4):
                a(f"buffer_load_dwordx4 v[{vR+8*it+4}:{vR+8*it+7}], v6, s[{sRA}:{sRA+3}], 0 offen offset:{it*1024} {ld}")
                if it == 0:
                    a(f"buffer_load_dwordx2 v[{vR+2}:{vR+3}], v4, s[{sRA}:{sRA+3}], 0 offen {ld}")
                else:
                    a(f"buffer_load_dwordx2 v[{vR+8*it+2}:{vR+8*it+3}], v6, s[{sRA}:{sRA+3}], 0 offen offset:{it*1024-8} {ld}")
            dummies(NROLE - 8)
            a(f"s_branch {done}")
        a(f"{nxt}:")
        nxt = self.lab("rl")
        if 2 in classes:
            a(f"s_cmp_lg_u32 s{sCLS}, 2\ns_cbranch_scc1 {nxt}")
            srd(a, sRA, 20, 1966080)
            srd(a, sRB, 22, 1966080)
            a(f"""
            v_lshrrev_b32 v6, 2, v0
            v_mul_u32_u24 v6, 3072, v6
            v_and_b32 v8, 3, v0
            v_lshl_add_u32 v6, v8, 4, v6
            s_lshl_b32 s91, s{sIDX}, 6
            """)
            for i in range(8):
                a(f"buffer_load_dwordx4 v[{vR+4*i}:{vR+4*i+3}], v6, s[{sRA}:{sRA+3}], s91 offen {ld}")
                a(f"buffer_load_dwordx4 v[{vR+32+4*i}:{vR+32+4*i+3}], v6, s[{sRB}:{sRB+3}], s91 offen {ld}")
                if i < 7:
                    a("s_add_u32 s91, s91, 245760")
            a(f"s_branch {done}")
        a(f"{nxt}:")
        nxt = self.lab("rl")
        if 3 in classes:
            a(f"s_cmp_lg_u32 s{sCLS}, 3\ns_cbranch_scc1 {nxt}")
            srd(a, sRA, 24, 1966080)
            a(f"""
            v_lshrrev_b32 v6, 1, v0
            v_mul_u32_u24 v6, 1280, v6
            v_and_b32 v8, 1, v0
            v_lshl_add_u32 v6, v8, 4, v6
            s_lshl_b32 s91, s{sIDX}, 5
            v_add_u32 v6, s91, v6
            """)
            for i in range(10):
                a(f"buffer_load_dwordx4 v[{vR+4*i}:{vR+4*i+3}], v6, s[{sRA}:{sRA+3}], 0 offen {ld}")
                if i < 9:
                    a("v_add_u32 v6, 204800, v6")
            dummies(NROLE - 10)
            a(f"s_branch {done}")
        a(f"{nxt}:")
        dummies(NROLE)
        a(f"{done}:")

    def stats(self, after):
        a = self.a
        S1, S2, S3, WS_ = 74, 82, 90, 98
        a(f"s_waitcnt vmcnt({after})")
        self.stamp(1)
        a("s_mov_b32 s84, 0x3f803f80")
        if self.fused:
            a(f"v_readfirstlane_b32 s85, v7\ns_mul_i32 s85, s85, 0x41c64e6d\ns_add_u32 s{sT}, s85, 0x3039")
        else:
            a(f"s_mov_b32 s{sT}, 0x1234567")
        for r in range(8):
            a(f"""
            v_dot2_f32_bf16 v{S1+r}, v{vQ+r}, s84, 0
            v_dot2_f32_bf16 v{S2+r}, v{vQ+r}, v{vQ+r}, 0
            v_dot2_f32_bf16 v{S3+r}, v{vQ+r}, v{vWR}, 0
            """)
        a(f"v_dot2_f32_bf16 v{WS_}, v{vWR}, s84, 0")
        for r in range(4):
            for b in (S1, S2, S3):
                a(f"v_permlane32_swap_b32 v{b+r}, v{b+r+4}")
        a(f"v_mov_b32 v{WS_+1}, v{WS_}")
        for r in range(4):
            for b in (S1, S2, S3):
                a(f"v_add_f32 v{b+r}, v{b+r}, v{b+r+4}")
        a(f"v_permlane32_swap_b32 v{WS_}, v{WS_+1}")
        for r in range(2):
            for b in (S1, S2, S3):
                a(f"v_permlane16_swap_b32 v{b+r}, v{b+r+2}")
        a(f"v_add_f32 v{WS_}, v{WS_}, v{WS_+1}")
        for r in range(2):
            for b in (S1, S2, S3):
                a(f"v_add_f32 v{b+r}, v{b+r}, v{b+r+2}")
        a(f"v_mov_b32 v{WS_+1}, v{WS_}")
        T = 100
        for k, b in enumerate((S1, S2, S3)):
            a(f"v_add_f32_dpp v{T+k}, v{b}, v{b} row_ror:8 row_mask:0xf bank_mask:0x3")
        a(f"v_permlane16_swap_b32 v{WS_}, v{WS_+1}")
        for k, b in enumerate((S1, S2, S3)):
            a(f"v_add_f32_dpp v{T+k}, v{b+1}, v{b+1} row_ror:8 row_mask:0xf bank_mask:0xc")
        a(f"v_add_f32 v{T+3}, v{WS_}, v{WS_+1}")
        a(f"""
        v_lshrrev_b32 v4, 3, v{vLANE}
        v_lshlrev_b32 v4, 4, v4
        v_add_f32_dpp v{T+3}, v{T+3}, v{T+3} row_ror:8 row_mask:0xf bank_mask:0xf
        """)
        for mod in ("row_half_mirror", "quad_perm:[1,0,3,2]", "quad_perm:[2,3,0,1]"):
            for k in range(4):
                a(f"v_add_f32_dpp v{T+k}, v{T+k}, v{T+k} {mod} row_mask:0xf bank_mask:0xf")
        a(f"""
        s_lshl_b32 s85, s{sWAVE}, 7
        s_add_u32 s85, s85, {RED}
        v_add_u32 v4, s85, v4
        s_mov_b32 s92, 0x01010101
        s_mov_b32 exec_lo, s92
        s_mov_b32 exec_hi, s92
        ds_write_b128 v4, v[{T}:{T+3}]
        s_mov_b64 exec, -1
        v_and_b32 v6, 7, v{vLANE}
        v_lshlrev_b32 v4, 4, v6
        s_waitcnt lgkmcnt(0)
        s_barrier
        """)
        P = 74
        for wv in range(5):
            a(f"ds_read_b128 v[{P+4*wv}:{P+4*wv+3}], v4 offset:{RED + 128*wv}")
        a(f"""
        s_lshl_b32 s85, s{sW}, 3
        v_add_u32 v8, s85, v6
        v_sub_u32 v104, 2047, v8
        s_mov_b32 s84, 0x3acccccd
        s_mov_b32 s86, 0xffff0000
        s_waitcnt lgkmcnt(0)
        v_pk_add_f32 v[{P}:{P+1}], v[{P}:{P+1}], v[{P+4}:{P+5}]
        v_pk_add_f32 v[{P+2}:{P+3}], v[{P+2}:{P+3}], v[{P+6}:{P+7}]
        v_pk_add_f32 v[{P+8}:{P+9}], v[{P+8}:{P+9}], v[{P+12}:{P+13}]
        v_pk_add_f32 v[{P+10}:{P+11}], v[{P+10}:{P+11}], v[{P+14}:{P+15}]
        v_pk_add_f32 v[{P}:{P+1}], v[{P}:{P+1}], v[{P+16}:{P+17}]
        v_pk_add_f32 v[{P+2}:{P+3}], v[{P+2}:{P+3}], v[{P+18}:{P+19}]
        v_pk_add_f32 v[{P}:{P+1}], v[{P}:{P+1}], v[{P+8}:{P+9}]
        v_pk_add_f32 v[{P+2}:{P+3}], v[{P+2}:{P+3}], v[{P+10}:{P+11}]
        v_pk_mul_f32 v[{P}:{P+1}], v[{P}:{P+1}], s[84:85] op_sel_hi:[1,0]
        v_fma_f32 v{P+1}, -v{P}, v{P}, v{P+1}
        v_max_f32 v{P+1}, 0, v{P+1}
        v_cvt_pk_bf16_f32 v{P+4}, v{P}, v{P+1}
        v_lshlrev_b32 v100, 16, v{P+4}
        v_and_b32 v{P+1}, s86, v{P+4}
        v_add_f32 v{P+1}, 0x3727c5ac, v{P+1}
        v_cvt_pk_bf16_f32 v{P+4}, v{P+1}, v{P+1}
        v_and_b32 v{P+1}, s86, v{P+4}
        v_sqrt_f32 v{P+1}, v{P+1}
        v_fma_f32 v{P+2}, -v100, v{P+3}, v{P+2}
        v_cvt_pk_bf16_f32 v{P+4}, v{P+1}, v{P+1}
        v_and_b32 v{P+1}, s86, v{P+4}
        v_rcp_f32 v101, v{P+1}
        v_mov_b32 v103, s{sT}
        v_mul_f32 v{P+2}, v{P+2}, v101
        v_cvt_pk_bf16_f32 v{P+4}, v{P+2}, v{P+2}
        v_and_b32 v102, s86, v{P+4}
        v_ashrrev_i32 v{P+5}, 31, v102
        v_or_b32 v{P+5}, 0x80000000, v{P+5}
        v_xor_b32 v{P+5}, v102, v{P+5}
        v_and_or_b32 v104, v{P+5}, s86, v104
        v_mov_b32 v105, s{sT}
        """)
        L = self.lab("nopub")
        a(f"""
        s_cmp_lg_u32 s{sWAVE}, 1
        s_cbranch_scc1 {L}
        v_lshlrev_b32 v4, 3, v8
        v_lshlrev_b32 v6, 4, v8
        s_mov_b32 s84, {RBOX}
        s_mov_b32 s85, {STBOX}
        s_mov_b64 exec, 0xff
        buffer_store_dwordx2 v[104:105], v4, s[{sWS}:{sWS+3}], s84 offen {self.pub}
        buffer_store_dwordx4 v[100:103], v6, s[{sWS}:{sWS+3}], s85 offen {self.pub}
        s_mov_b64 exec, -1
        {L}:
        """)
        for r in range(8):
            a(f"v_readlane_b32 s{sST+2*r}, v100, {r}\nv_readlane_b32 s{sST+2*r+1}, v101, {r}")
        self.stamp(2)

    def kv(self, after):
        a = self.a
        KF, SH, ACC, VF = 74, 96, 104, 120
        G = 42
        a("s_mov_b32 s86, 0xffff0000")
        for r in range(8):
            a(f"v_lshlrev_b32 v{vX+2*r}, 16, v{vQ+r}\nv_and_b32 v{vX+2*r+1}, s86, v{vQ+r}")
        a(f"s_waitcnt vmcnt({after + 8})")
        for j in range(4):
            for c in range(2):
                src = vSH + 2 * c + j // 2
                a(f"v_lshlrev_b32 v{SH+2*j+c}, 16, v{src}" if j % 2 == 0 else f"v_and_b32 v{SH+2*j+c}, s86, v{src}")
        for r in range(3):
            a(f"v_and_b32 v{vK+r}, s90, v{vK+r}")
        for r in range(11):
            a(f"v_lshlrev_b32 v{KF+2*r}, 16, v{vK+r}\nv_and_b32 v{KF+2*r+1}, s86, v{vK+r}")
        pr = lambda b: f"v[{b}:{b+1}]"
        for r in range(8):
            a(f"v_pk_mul_f32 {pr(ACC+2*r)}, {pr(KF+2*r)}, {pr(SH+6)}")
        for j in (2, 1, 0):
            for r in range(8):
                a(f"v_pk_fma_f32 {pr(ACC+2*r)}, {pr(KF+2*(r+3-j))}, {pr(SH+2*j)}, {pr(ACC+2*r)}")
        a(f"""
        v_lshrrev_b32 v4, 2, v0
        v_mul_u32_u24 v4, 49152, v4
        v_and_b32 v6, 3, v0
        v_lshl_add_u32 v4, v6, 4, v4
        s_lshl_b32 s84, s{sW}, 6
        s_add_u32 s85, s84, 16384
        s_add_u32 s89, s84, 32768
        v_mov_b32 v{G+3}, s{sT}
        v_mov_b32 v{G+7}, s{sT}
        v_mov_b32 v{G+9}, s{sT}
        v_mov_b32 v{G+11}, s{sT}
        s_waitcnt vmcnt({after})
        """)
        self.stamp(3)
        for r in range(8):
            a(f"v_lshlrev_b32 v{VF+2*(r%4)}, 16, v{vV+r}\nv_and_b32 v{VF+2*(r%4)+1}, s86, v{vV+r}")
            a(f"v_pk_mul_f32 {pr(ACC+2*r)}, {pr(ACC+2*r)}, {pr(VF+2*(r%4))}")
        for c in range(2):
            for d in range(4):
                dst = G + 4 * c + d if d < 3 else G + 8 + 2 * c
                a(f"v_cvt_pk_bf16_f32 v{dst}, v{ACC+2*(7-2*d)+c}, v{ACC+2*(6-2*d)+c}")
        a(f"""
        buffer_store_dwordx4 v[{G}:{G+3}], v4, s[{sWS}:{sWS+3}], s84 offen {self.pub}
        buffer_store_dwordx4 v[{G+4}:{G+7}], v4, s[{sWS}:{sWS+3}], s85 offen {self.pub}
        buffer_store_dwordx4 v[{G+8}:{G+11}], v4, s[{sWS}:{sWS+3}], s89 offen {self.pub}
        """)
        self.stamp(4)

    def p3_pre(self):
        a = self.a
        pr = lambda b: f"v[{b}:{b+1}]"
        T = 200
        a("s_mov_b32 s86, 0xffff0000\ns_mov_b32 s84, 0xbfb8aa3b")
        for h in range(2):
            rows = range(4 * h, 4 * h + 4)
            t = lambda r, k: T + 6 * (r % 4) + k
            for r in rows:
                a(f"v_pk_add_f32 {pr(t(r,0))}, {pr(vX+2*r)}, s[{sST+2*r}:{sST+2*r+1}] op_sel_hi:[1,0] neg_lo:[0,1] neg_hi:[0,1]")
            for r in rows:
                a(f"v_cvt_pk_bf16_f32 v{t(r,2)}, v{t(r,0)}, v{t(r,1)}")
            for r in rows:
                a(f"v_lshlrev_b32 v{t(r,0)}, 16, v{t(r,2)}\nv_and_b32 v{t(r,1)}, s86, v{t(r,2)}")
            for r in rows:
                a(f"v_pk_mul_f32 {pr(t(r,0))}, {pr(t(r,0))}, s[{sST+2*r}:{sST+2*r+1}] op_sel:[0,1] op_sel_hi:[1,1]")
            for r in rows:
                a(f"v_cvt_pk_bf16_f32 v{t(r,2)}, v{t(r,0)}, v{t(r,1)}")
            for r in rows:
                a(f"v_lshlrev_b32 v{t(r,0)}, 16, v{t(r,2)}\nv_and_b32 v{t(r,1)}, s86, v{t(r,2)}")
            for r in rows:
                a(f"v_pk_mul_f32 {pr(t(r,2))}, {pr(t(r,0))}, s[84:85] op_sel_hi:[1,0]")
            for r in rows:
                a(f"v_exp_f32 v{t(r,2)}, v{t(r,2)}\nv_exp_f32 v{t(r,3)}, v{t(r,3)}")
            for r in rows:
                a(f"v_pk_add_f32 {pr(t(r,2))}, {pr(t(r,2))}, 1.0 op_sel_hi:[1,0]")
            for r in rows:
                a(f"v_rcp_f32 v{t(r,2)}, v{t(r,2)}\nv_rcp_f32 v{t(r,3)}, v{t(r,3)}")
            for r in rows:
                a(f"v_pk_mul_f32 {pr(t(r,2))}, {pr(t(r,2))}, {pr(t(r,0))}")
            for r in rows:
                a(f"v_cvt_pk_bf16_f32 v{t(r,4)}, v{t(r,2)}, v{t(r,3)}")
            for r in rows:
                a(f"v_lshlrev_b32 v{t(r,2)}, 16, v{t(r,4)}\nv_and_b32 v{t(r,3)}, s86, v{t(r,4)}")
            for r in rows:
                a(f"v_pk_mul_f32 {pr(vC+2*r)}, {pr(t(r,0))}, {pr(t(r,2))}")

    def poll(self, loads, tags, tmp):
        a = self.a
        L, D = self.lab("poll"), self.lab("polled")
        a(f"s_mov_b32 s95, 0\n{L}:")
        for ld in loads:
            a(ld)
        a("s_waitcnt vmcnt(0)")
        if not self.fused:
            return
        tags = list(tags)
        a(f"v_xor_b32 v{tmp}, s{sT}, v{tags[0]}")
        for t in tags[1:]:
            a(f"v_xor_b32 v{tmp+1}, s{sT}, v{t}\nv_or_b32 v{tmp}, v{tmp}, v{tmp+1}")
        a(f"""
        v_cmp_ne_u32 vcc, 0, v{tmp}
        s_add_u32 s95, s95, 1
        s_cmp_gt_u32 s95, {SPIN}
        s_cbranch_scc1 {D}
        s_cbranch_vccnz {L}
        {D}:
        """)

    def conv(self, p3):
        a = self.a
        ACC = 224 - 32
        SET = [(64, 96), (128, 160)]
        W4 = self.lab("conv_w4")
        a(f"""
        v_mov_b32 v44, 0
        v_mov_b32 v45, 0
        v_mov_b32 v46, 0
        v_mov_b32 v47, 0
        v_lshrrev_b32 v4, 5, v0
        v_mul_u32_u24 v4, {XS}, v4
        v_and_b32 v6, 31, v0
        v_min_u32 v6, 29, v6
        v_lshl_add_u32 v4, v6, 4, v4
        v_cmp_gt_u32 vcc, 128, v0
        s_and_saveexec_b64 s[82:83], vcc
        ds_write_b128 v4, v[44:47] offset:{XB}
        s_mov_b64 exec, s[82:83]
        s_cmp_eq_u32 s{sWAVE}, 4
        s_cbranch_scc1 {W4}
        s_mul_i32 s84, s{sWAVE}, {HC_S}
        s_add_u32 s84, s84, {HC0}
        v_and_b32 v6, 7, v{vLANE}
        v_lshrrev_b32 v4, 1, v6
        v_mul_u32_u24 v4, {HC_K}, v4
        v_and_b32 v6, 1, v6
        v_lshl_add_u32 v4, v6, 4, v4
        v_add_u32 v4, s84, v4
        ds_write_b128 v4, v[44:47]
        v_lshlrev_b32 v4, 4, v{vLANE}
        v_add_u32 v4, s84, v4
        v_cmp_ne_u32 vcc, 0, v{vLANE}
        s_waitcnt vmcnt(3)
        v_cndmask_b32 v{vR+2}, 0, v{vR+2}, vcc
        v_cndmask_b32 v{vR+3}, 0, v{vR+3}, vcc
        """)
        for it in range(4):
            W = vR + 8 * it + 4
            O = 48 + 12 * (it % 2)
            a(f"ds_write_b128 v4, v[{W}:{W+3}] offset:{32 + 1024*it}")
            for d in range(4):
                a(f"v_alignbyte_b32 v{O+d}, v{W+d}, v{W+d-1}, 2")
            for d in range(4):
                a(f"v_mov_b32 v{O+4+d}, v{W+d-1}")
            for d in range(4):
                a(f"v_alignbyte_b32 v{O+8+d}, v{W+d-1}, v{W+d-2}, 2")
            for k in range(1, 4):
                a(f"ds_write_b128 v4, v[{O+4*(k-1)}:{O+4*(k-1)+3}] offset:{k*HC_K + 32 + 1024*it}")
        a(f"""
        s_waitcnt lgkmcnt(0)
        s_lshr_b32 s94, s94, s93
        s_and_b32 s94, s94, 0xffff
        v_lshrrev_b32 v6, 4, v{vLANE}
        v_and_b32 v8, 15, v{vLANE}
        v_lshlrev_b32 v4, 3, v6
        v_add_u32 v4, v4, v8
        v_sub_u32 v4, 15, v4
        v_and_b32 v42, 1, v4
        v_lshlrev_b32 v42, 4, v42
        v_lshlrev_b32 v42, v42, s94
        v_ashrrev_i32 v4, 1, v4
        """)
        for d in range(4):
            a(f"v_cmp_eq_u32 vcc, {d}, v4\nv_cndmask_b32 v{224+d}, 0, v42, vcc")
        a(f"""
        v_add_u32 v4, 1, v8
        v_sub_u32 v42, 0, v4
        v_and_b32 v42, 3, v42
        v_add_u32 v4, v4, v42
        v_lshl_add_u32 v4, v6, 3, v4
        v_mul_u32_u24 v42, {HC_K}, v42
        v_lshl_add_u32 v4, v4, 1, v42
        v_add_u32 v228, s84, v4
        v_lshlrev_b32 v4, 1, v8
        v_sub_u32 v4, v4, v6
        v_add_u32 v4, 31, v4
        s_mul_i32 s84, s{sWAVE}, {XS}
        s_add_u32 s84, s84, {XB}
        v_lshl_add_u32 v229, v4, 4, s84
        {W4}:
        """)
        if p3:
            self.p3_pre()
        G4 = self.lab("conv_g4")
        a(f"""
        s_cmp_eq_u32 s{sWAVE}, 4
        s_cbranch_scc1 {G4}
        s_lshr_b32 s84, s{sIDX}, 1
        s_mul_i32 s84, s84, 49152
        s_and_b32 s85, s{sIDX}, 1
        s_lshl_b32 s86, s85, 14
        s_add_u32 s86, s86, s84
        s_lshl_b32 s85, s85, 3
        s_add_u32 s85, s85, s84
        s_add_u32 s85, s85, 32768
        v_lshlrev_b32 v4, 4, v0
        v_add_u32 v6, s85, v4
        v_add_u32 v4, s86, v4
        s_movk_i32 s84, 0x1000
        s_movk_i32 s85, 0x2000
        s_movk_i32 s86, 0x3000
        """)
        self.stamp(5)
        so = ["0", "s84", "s85", "s86"]
        loads = []
        for k in range(4):
            loads.append(f"buffer_load_dwordx4 v[{64+4*k}:{67+4*k}], v4, s[{sWS}:{sWS+3}], {so[k]} offen {self.get}")
            loads.append(f"buffer_load_dwordx2 v[{80+2*k}:{81+2*k}], v6, s[{sWS}:{sWS+3}], {so[k]} offen {self.get}")
        self.poll(loads, [67 + 4 * k for k in range(4)] + [81 + 2 * k for k in range(4)], 42)
        self.stamp(6)
        a(f"""
        v_and_b32 v4, 3, v0
        v_mul_u32_u24 v4, {XS}, v4
        v_lshrrev_b32 v6, 2, v0
        v_lshl_add_u32 v4, v6, 4, v4
        v_add_u32 v4, {XB + 480}, v4
        """)
        for k in range(4):
            a(f"v_mov_b32 v{67+4*k}, v{80+2*k}")
        for k in range(4):
            a(f"ds_write_b128 v4, v[{64+4*k}:{67+4*k}] offset:{1024*k}")
        a(f"{G4}:\ns_waitcnt lgkmcnt(0)\ns_barrier")
        M4 = self.lab("conv_m4")
        a(f"s_cmp_eq_u32 s{sWAVE}, 4\ns_cbranch_scc1 {M4}")

        def reads(s):
            A, B = SET[s]
            out = []
            for i in range(8):
                out.append(f"ds_read_b128 v[{B+4*(7-i)}:{B+4*(7-i)+3}], v229 offset:{512*(7-i)}")
                out.append(f"ds_read_b64 v[{A+4*i}:{A+4*i+1}], v228 offset:{512*i}")
                out.append(f"ds_read_b64 v[{A+4*i+2}:{A+4*i+3}], v228 offset:{512*i+8}")
            return out

        def mfmas(s):
            A, B = SET[s]
            return [f"v_mfma_f32_16x16x32_bf16 v[{ACC+4*(x+y)}:{ACC+4*(x+y)+3}], v[{A+4*x}:{A+4*x+3}], v[{B+4*y}:{B+4*y+3}], v[{ACC+4*(x+y)}:{ACC+4*(x+y)+3}]"
                    for x in range(8) for y in range(7 - x, -1, -1)]

        rd = reads(0)
        for r in rd[:12]:
            a(r)
        a("s_waitcnt lgkmcnt(3)")
        for r in rd[12:]:
            a(r)
        a("v_add_u32 v228, 64, v228\nv_subrev_u32 v229, 64, v229\ns_mov_b32 s84, 0\ns_waitcnt lgkmcnt(0)")
        for b in range(8):
            a(f"v_mfma_f32_16x16x32_bf16 v[{ACC+4*b}:{ACC+4*b+3}], v[224:227], v[{96+4*b}:{99+4*b}], 0")
        LP = self.lab("conv_loop")
        body = Asm()
        for s in range(2):
            rd, mf = reads(1 - s), mfmas(s)
            for i, m in enumerate(mf):
                body(m)
                if i < 24:
                    body(rd[i])
                if i == 26:
                    body("v_add_u32 v228, 64, v228")
                if i == 27:
                    body("v_subrev_u32 v229, 64, v229")
                if s == 1 and i == 28:
                    body("s_add_u32 s84, s84, 1")
                if s == 1 and i == 29:
                    body("s_cmp_lt_u32 s84, 4")
            body("s_waitcnt lgkmcnt(0)")
        assert hazard.check_loop(body.lines) == 0
        a(f"{LP}:")
        a.lines += body.lines
        a(f"s_cbranch_scc1 {LP}")
        self.stamp(7)
        a(f"""
        v_lshrrev_b32 v6, 4, v{vLANE}
        v_and_b32 v4, 1, v6
        v_lshlrev_b32 v4, 9, v4
        v_lshrrev_b32 v6, 1, v6
        v_lshl_add_u32 v4, v6, 8, v4
        v_and_b32 v6, 15, v{vLANE}
        v_lshl_add_u32 v4, v6, 4, v4
        s_mul_i32 s84, s{sWAVE}, {HC_S + 64}
        v_add_u32 v4, s84, v4
        """)
        for n in range(8):
            a(f"v_cvt_pk_bf16_f32 v{64+2*n}, v{ACC+4*n}, v{ACC+4*n+1}\nv_cvt_pk_bf16_f32 v{65+2*n}, v{ACC+4*n+2}, v{ACC+4*n+3}")
        for m in range(4):
            a(f"v_permlane16_swap_b32 v{64+4*m}, v{66+4*m}\nv_permlane16_swap_b32 v{65+4*m}, v{67+4*m}")
        for m in range(4):
            a(f"ds_write_b128 v4, v[{64+4*m}:{67+4*m}] offset:{HC0 + 1024*m}")
        a(f"{M4}:\ns_waitcnt lgkmcnt(0)\ns_barrier")
        E4 = self.lab("conv_e4")
        a(f"""
        s_cmp_eq_u32 s{sWAVE}, 4
        s_cbranch_scc1 {E4}
        v_and_b32 v8, 3, v0
        v_lshrrev_b32 v6, 2, v0
        v_mul_u32_u24 v4, {HC_S + 64}, v8
        v_lshrrev_b32 v42, 5, v6
        v_lshl_add_u32 v4, v42, 9, v4
        v_and_b32 v42, 1, v6
        v_lshl_add_u32 v4, v42, 8, v4
        v_bfe_u32 v43, v6, 1, 4
        v_lshl_add_u32 v4, v43, 4, v4
        """)
        for k in range(4):
            a(f"ds_read_b128 v[{64+4*k}:{67+4*k}], v4 offset:{HC0 + 1024*k}")
        a(f"""
        v_mul_u32_u24 v4, 10240, v6
        v_lshl_add_u32 v4, v8, 4, v4
        v_lshrrev_b32 v6, 1, v6
        v_mul_u32_u24 v6, 10240, v6
        v_lshl_add_u32 v6, v42, 5, v6
        v_lshl_add_u32 v6, v8, 3, v6
        s_lshr_b32 s84, s{sIDX}, 1
        s_lshl_b32 s84, s84, 6
        s_and_b32 s85, s{sIDX}, 1
        s_mul_i32 s85, s85, 5120
        s_add_u32 s84, s84, s85
        s_add_u32 s84, s84, {YMAIN}
        s_lshl_b32 s85, s{sIDX}, 6
        s_add_u32 s85, s85, {YEXT}
        """)
        for k in range(4):
            a(f"v_mov_b32 v{81+2*k}, s{sT}")
        for k in range(4):
            a(f"""
            s_waitcnt lgkmcnt({3-k})
            v_mov_b32 v{80+2*k}, v{67+4*k}
            v_mov_b32 v{67+4*k}, s{sT}
            buffer_store_dwordx4 v[{64+4*k}:{67+4*k}], v4, s[{sWS}:{sWS+3}], s84 offen {self.pub}
            buffer_store_dwordx2 v[{80+2*k}:{81+2*k}], v6, s[{sWS}:{sWS+3}], s85 offen {self.pub}
            """)
            if k < 3:
                a("s_add_u32 s84, s84, 655360\ns_add_u32 s85, s85, 327680")
        a(f"{E4}:")
        self.stamp(8)

    def rank16(self, v, cnt, tmp):
        a = self.a
        a(f"v_mov_b32 v{cnt}, 0")
        for k in range(1, 16):
            a(f"v_sub_co_u32_dpp v{tmp}, vcc, v{v}, v{v} row_ror:{k} row_mask:0xf bank_mask:0xf\nv_addc_co_u32 v{cnt}, vcc, 0, v{cnt}, vcc")

    def select_init(self):
        self.a(f"""
        v_lshlrev_b32 v4, 2, v{vLANE}
        v_min_u32 v4, {SEL_N - SEL_C}, v4
        v_mov_b32 v6, 0
        ds_write_b32 v4, v6 offset:{SEL_C}
        """)

    def select(self):
        a = self.a
        KY = [44 + 2 * i for i in range(8)]
        W4, RK, MORE, NOMORE, DONE, W4B = (self.lab(x) for x in ("sel_w4", "sel_rank", "sel_more", "sel_nomore", "sel_done", "sel_w4b"))
        a(f"""
        v_mov_b32 v61, 0
        s_cmp_eq_u32 s{sWAVE}, 4
        s_cbranch_scc1 {W4}
        v_lshlrev_b32 v4, 4, v0
        s_mov_b32 s84, {RBOX}
        s_mov_b32 s85, {RBOX + 4096}
        s_mov_b32 s86, {RBOX + 8192}
        s_mov_b32 s89, {RBOX + 12288}
        """)
        so = ["s84", "s85", "s86", "s89"]
        self.poll([f"buffer_load_dwordx4 v[{44+4*k}:{47+4*k}], v4, s[{sWS}:{sWS+3}], {so[k]} offen {self.get}" for k in range(4)],
                  [45 + 2 * i for i in range(8)], 42)
        self.stamp(6)
        a(f"""
        v_max3_u32 v61, v{KY[0]}, v{KY[1]}, v{KY[2]}
        v_max3_u32 v62, v{KY[3]}, v{KY[4]}, v{KY[5]}
        v_max3_u32 v61, v61, v{KY[6]}, v{KY[7]}
        v_lshrrev_b32 v4, 4, v0
        v_max_u32 v61, v61, v62
        v_lshlrev_b32 v4, 2, v4
        v_max_u32_dpp v62, v61, v61 row_ror:8 row_mask:0xf bank_mask:0xf
        v_max_u32_dpp v62, v62, v62 row_ror:4 row_mask:0xf bank_mask:0xf
        v_max_u32_dpp v62, v62, v62 row_ror:2 row_mask:0xf bank_mask:0xf
        v_max_u32_dpp v62, v62, v62 row_ror:1 row_mask:0xf bank_mask:0xf
        s_mov_b32 s84, 0x00010001
        s_mov_b32 exec_lo, s84
        s_mov_b32 exec_hi, s84
        ds_write_b32 v4, v62 offset:{SEL_G}
        s_mov_b64 exec, -1
        {W4}:
        v_and_b32 v8, 15, v{vLANE}
        v_lshlrev_b32 v8, 2, v8
        s_waitcnt lgkmcnt(0)
        s_barrier
        ds_read_b32 v60, v8 offset:{SEL_G}
        v_mov_b32 v6, {SEL_N}
        v_mov_b32 v43, 1
        s_waitcnt lgkmcnt(0)
        {RK}:
        s_cmp_eq_u32 s{sWAVE}, 4
        s_cbranch_scc1 {NOMORE}
        """)
        self.rank16(60, 62, 63)
        a(f"""
        v_cmp_eq_u32 vcc, 8, v62
        v_mov_b32 v63, v61
        s_ff1_i32_b64 s84, vcc
        v_readlane_b32 s85, v60, s84
        {MORE}:
        v_cmp_le_u32 vcc, s85, v63
        s_and_b64 exec, vcc, vcc
        s_cbranch_execz {NOMORE}
        ds_add_rtn_u32 v62, v6, v43
        """)
        for i in range(8):
            a(f"v_cmp_lt_u32 vcc, v{KY[i]}, v63\nv_cndmask_b32 v{45+2*i}, 0, v{KY[i]}, vcc")
        a(f"""
        s_waitcnt lgkmcnt(0)
        v_min_u32 v62, 16, v62
        v_lshlrev_b32 v62, 2, v62
        ds_write_b32 v62, v63 offset:{SEL_C}
        v_max3_u32 v63, v45, v47, v49
        v_max3_u32 v63, v63, v51, v53
        v_max3_u32 v63, v63, v55, v57
        v_max_u32 v63, v63, v59
        s_branch {MORE}
        {NOMORE}:
        s_mov_b64 exec, -1
        s_waitcnt lgkmcnt(0)
        s_barrier
        ds_read_b32 v62, v6
        ds_read_b32 v60, v8 offset:{SEL_C}
        s_waitcnt lgkmcnt(0)
        v_readfirstlane_b32 s84, v62
        s_cmp_le_u32 s84, 16
        s_cbranch_scc1 {DONE}
        s_barrier
        """)
        self.select_init()
        a(f"""
        v_mov_b32 v6, {SEL_N}
        s_waitcnt lgkmcnt(0)
        s_barrier
        s_branch {RK}
        {DONE}:
        """)

    def silu(self, x, t):
        self.a(f"""
        v_mul_f32 v{t}, s84, v{x}
        v_exp_f32 v{t}, v{t}
        v_add_f32 v{t}, 1.0, v{t}
        v_rcp_f32 v{t}, v{t}
        v_mul_f32 v{x}, v{x}, v{t}
        """)

    def rnd(self, regs, t):
        for i in range(0, len(regs), 2):
            self.a(f"v_cvt_pk_bf16_f32 v{t}, v{regs[i]}, v{regs[i+1]}\nv_lshlrev_b32 v{regs[i]}, 16, v{t}\nv_and_b32 v{regs[i+1]}, s86, v{t}")

    def ffn1(self):
        a = self.a
        FR, CS, AC, QF = 128, 192, 208, 64
        self.select_init()
        a(f"""
        v_lshrrev_b32 v4, 2, v0
        v_bfe_u32 v6, v0, 5, 1
        v_lshlrev_b32 v6, 1, v6
        v_and_b32 v8, 3, v0
        v_xor_b32 v6, v6, v8
        v_lshlrev_b32 v4, 6, v4
        v_lshl_add_u32 v4, v6, 4, v4
        v_add_u32 v6, 40960, v4
        s_waitcnt vmcnt(0)
        """)
        for i in range(8):
            a(f"ds_write_b128 v4, v[{vR+4*i}:{vR+4*i+3}] offset:{BIG + 5120*i}\nds_write_b128 v6, v[{vR+32+4*i}:{vR+32+4*i+3}] offset:{BIG + 5120*i}")
        a(f"""
        v_lshrrev_b32 v6, 4, v{vLANE}
        v_bfe_u32 v4, v{vLANE}, 2, 2
        v_lshl_add_u32 v4, v6, 3, v4
        v_lshlrev_b32 v4, 6, v4
        v_and_b32 v8, 3, v{vLANE}
        v_lshl_add_u32 v4, v8, 3, v4
        v_and_b32 v6, 1, v6
        v_lshl_add_u32 v4, v6, 5, v4
        s_lshl_b32 s84, s{sWAVE}, 13
        v_add_u32 v4, s84, v4
        v_xor_b32 v6, 32, v4
        v_mov_b32 v44, 0x3f803f80
        v_mov_b32 v45, 0x3f803f80
        v_mov_b32 v46, 0x3f803f80
        v_mov_b32 v47, 0x3f803f80
        s_waitcnt lgkmcnt(0)
        s_barrier
        """)
        fr = lambda s, m, t: FR + 16 * s + 8 * m + 4 * t
        for s in range(4):
            for m in range(2):
                for t in range(2):
                    for hh in range(2):
                        a(f"ds_read_b64_tr_b16 v[{fr(s,m,t)+2*hh}:{fr(s,m,t)+2*hh+1}], v{(4,6)[t]} offset:{BIG + 40960*m + 2048*s + 256*hh}")
            a("s_waitcnt lgkmcnt(0)")
            for m in range(2):
                for t in range(2):
                    c = CS + 8 * m + 4 * t
                    a(f"v_mfma_f32_16x16x32_bf16 v[{c}:{c+3}], v[{fr(s,m,t)}:{fr(s,m,t)+3}], v[44:47], " + ("0" if s == 0 else f"v[{c}:{c+3}]"))
        self.stamp(5)
        self.select()
        self.stamp(7)
        a(f"""
        v_and_b32 v4, 2047, v60
        v_sub_u32 v61, 2047, v4
        v_mul_u32_u24 v4, 1280, v61
        v_lshrrev_b32 v6, 4, v{vLANE}
        v_lshl_add_u32 v4, v6, 4, v4
        s_lshl_b32 s84, s{sWAVE}, 8
        """)
        for s in range(4):
            a(f"buffer_load_dwordx4 v[{QF+4*s}:{QF+4*s+3}], v4, s[{sQ}:{sQ+3}], s84 offen offset:{64*s}")
        a(f"v_lshlrev_b32 v42, 4, v61\ns_mov_b32 s89, {STBOX}")
        a(f"buffer_load_dwordx4 v[80:83], v42, s[{sWS}:{sWS+3}], s89 offen {self.get}")
        self.rank16(60, 62, 63)
        a(f"""
        v_sub_u32 v62, 15, v62
        v_lshlrev_b32 v62, 4, v62
        v_and_b32 v84, 15, v{vLANE}
        s_waitcnt vmcnt(0)
        """)
        if self.fused:
            OK = self.lab("st_ok")
            a(f"v_cmp_ne_u32 vcc, s{sT}, v83\ns_cbranch_vccz {OK}")
            self.poll([f"buffer_load_dwordx4 v[80:83], v42, s[{sWS}:{sWS+3}], s89 offen {self.get}"], [83], 44)
            a(f"{OK}:")
        for s in range(4):
            for m in range(2):
                for t in range(2):
                    c = AC + 8 * m + 4 * t
                    a(f"v_mfma_f32_16x16x32_bf16 v[{c}:{c+3}], v[{fr(s,m,t)}:{fr(s,m,t)+3}], v[{QF+4*s}:{QF+4*s+3}], " + ("0" if s == 0 else f"v[{c}:{c+3}]"))
        a(f"""
        v_mov_b32 v85, v81
        v_mov_b32 v86, v61
        v_mov_b32 v87, 0
        ds_write_b128 v62, v[84:87] offset:{SEL_T}
        s_lshl_b32 s84, s{sWAVE}, 12
        v_lshlrev_b32 v4, 4, v{vLANE}
        v_add_u32 v4, s84, v4
        """)
        for i in range(16):
            a(f"v_fma_f32 v{AC+i}, -v80, v{CS+i}, v{AC+i}")
        for q in range(4):
            a(f"ds_write_b128 v4, v[{AC+4*q}:{AC+4*q+3}] offset:{BIG + 1024*q}")
        FIN = self.lab("ffn1_done")
        a(f"""
        v_and_b32 v4, 15, v{vLANE}
        v_lshlrev_b32 v4, 4, v4
        s_waitcnt lgkmcnt(0)
        s_barrier
        s_cmp_ge_u32 s{sWAVE}, 2
        s_cbranch_scc1 {FIN}
        ds_read_b128 v[84:87], v4 offset:{SEL_T}
        v_and_b32 v6, 48, v{vLANE}
        s_lshl_b32 s84, s{sWAVE}, 10
        s_mov_b32 s86, 0xffff0000
        s_waitcnt lgkmcnt(0)
        v_and_b32 v84, 15, v84
        v_add_u32 v6, v6, v84
        v_lshl_add_u32 v6, v6, 4, s84
        """)
        for wv in range(5):
            a(f"ds_read_b128 v[{128+8*wv}:{131+8*wv}], v6 offset:{BIG + 4096*wv}\nds_read_b128 v[{132+8*wv}:{135+8*wv}], v6 offset:{BIG + 4096*wv+2048}")
        a(f"""
        s_lshl_b32 s85, s{sIDX}, 1
        s_add_u32 s85, s85, s{sWAVE}
        s_lshl_b32 s85, s85, 9
        s_add_u32 s85, s85, {HBOX}
        v_lshrrev_b32 v6, 4, v{vLANE}
        v_lshl_add_u32 v4, v6, 7, v4
        v_mov_b32 v46, s{sT}
        v_mov_b32 v47, s{sT}
        s_mov_b32 s84, 0xbfb8aa3b
        s_waitcnt lgkmcnt(0)
        """)
        pr = lambda b: f"v[{b}:{b+1}]"
        for i in range(0, 8, 2):
            a(f"v_pk_add_f32 {pr(128+i)}, {pr(128+i)}, {pr(136+i)}\nv_pk_add_f32 {pr(144+i)}, {pr(144+i)}, {pr(152+i)}")
        for i in range(0, 8, 2):
            a(f"v_pk_add_f32 {pr(128+i)}, {pr(128+i)}, {pr(160+i)}")
        for i in range(0, 8, 2):
            a(f"v_pk_add_f32 {pr(128+i)}, {pr(128+i)}, {pr(144+i)}")
        for i in range(8):
            a(f"v_mul_f32 v{128+i}, v{128+i}, v85")
        self.rnd(list(range(128, 136)), 42)
        for i in range(4):
            self.silu(128 + i, 136 + i)
        self.rnd(list(range(128, 132)), 42)
        for i in range(4):
            a(f"v_mul_f32 v{128+i}, v{128+i}, v{132+i}")
        NI = self.lab("noidx")
        a(f"""
        v_cvt_pk_bf16_f32 v44, v128, v129
        v_cvt_pk_bf16_f32 v45, v130, v131
        s_mov_b32 s82, 0x00ff00ff
        s_mov_b32 exec_lo, s82
        s_mov_b32 exec_hi, s82
        buffer_store_dwordx4 v[44:47], v4, s[{sWS}:{sWS+3}], s85 offen {self.pub}
        s_cmp_lg_u32 s85, {HBOX}
        s_cbranch_scc1 {NI}
        s_mov_b64 exec, 0xff
        v_mov_b32 v87, s{sT}
        v_lshlrev_b32 v4, 3, v{vLANE}
        s_mov_b32 s85, {IDXBOX}
        buffer_store_dwordx2 v[86:87], v4, s[{sWS}:{sWS+3}], s85 offen {self.pub}
        """)
        if self.fused:
            a(f"s_mov_b64 exec, 1\nv_mov_b32 v4, {EPOCH}\nbuffer_store_dword v87, v4, s[{sWS}:{sWS+3}], 0 offen sc1")
        a(f"{NI}:\ns_mov_b64 exec, -1\n{FIN}:")
        self.stamp(8)

    def ffn2(self, p3):
        a = self.a
        FR, HB = 128, 64
        self.select_init()
        a(f"v_lshlrev_b32 v4, 4, v0\ns_waitcnt vmcnt(0)")
        for i in range(10):
            a(f"ds_write_b128 v4, v[{vR+4*i}:{vR+4*i+3}] offset:{BIG + 5120*i}")
        a(f"""
        s_min_u32 s84, s{sWAVE}, 3
        s_mul_i32 s84, s84, 12288
        v_lshlrev_b32 v4, 3, v{vLANE}
        v_add_u32 v4, s84, v4
        s_waitcnt lgkmcnt(0)
        s_barrier
        """)
        for n in range(24):
            a(f"ds_read_b64_tr_b16 v[{FR+2*n}:{FR+2*n+1}], v4 offset:{BIG + 512*n}")
            if n % 12 == 11:
                a("s_waitcnt lgkmcnt(0)")
        if p3:
            self.p3_pre()
        self.stamp(5)
        self.select()
        self.rank16(60, 62, 63)
        a(f"""
        v_sub_u32 v62, 15, v62
        v_lshlrev_b32 v62, 4, v62
        ds_write_b32 v62, v60 offset:{SEL_T}
        v_and_b32 v4, 7, v{vLANE}
        v_lshlrev_b32 v4, 4, v4
        s_waitcnt lgkmcnt(0)
        ds_read_b32 v60, v4 offset:{SEL_T}
        s_waitcnt lgkmcnt(0)
        """)
        self.stamp(7)
        W4, NOTW, FIN = self.lab("ffn2_w4"), self.lab("ffn2_notw"), self.lab("ffn2_done")
        a(f"""
        s_cmp_eq_u32 s{sWAVE}, 4
        s_cbranch_scc1 {W4}
        v_lshrrev_b32 v6, 4, v{vLANE}
        v_lshl_add_u32 v4, v6, 7, v4
        v_bfe_u32 v6, v{vLANE}, 3, 1
        v_lshl_add_u32 v4, v6, 9, v4
        s_mul_i32 s84, s{sWAVE}, 12288
        s_add_u32 s84, s84, {HBOX}
        s_add_u32 s85, s84, 4096
        s_add_u32 s86, s84, 8192
        """)
        self.poll([f"buffer_load_dwordx3 v[{HB+4*m}:{HB+4*m+2}], v4, s[{sWS}:{sWS+3}], s{84 + m // 4} offen offset:{1024*(m%4)} {self.get}" for m in range(12)],
                  [HB + 4 * m + 2 for m in range(12)], 42)
        for m in range(12):
            for hi in range(2):
                c = 112 + 4 * hi
                n = 2 * m + hi
                a(f"v_mfma_f32_16x16x16_bf16 v[{c}:{c+3}], v[{FR+2*n}:{FR+2*n+1}], v[{HB+4*m}:{HB+4*m+1}], " + ("0" if m == 0 else f"v[{c}:{c+3}]"))
        a(f"s_lshl_b32 s84, s{sWAVE}, 10\nv_lshlrev_b32 v4, 4, v{vLANE}\nv_add_u32 v4, s84, v4")
        for i in range(4):
            a(f"v_add_f32_dpp v{112+i}, v{116+i}, v{112+i} row_ror:8 row_mask:0xf bank_mask:0xf")
        a(f"""
        ds_write_b128 v4, v[112:115] offset:{BIG}
        s_branch {NOTW}
        {W4}:
        v_and_b32 v4, 2047, v60
        v_sub_u32 v61, 2047, v4
        v_lshrrev_b32 v6, 4, v{vLANE}
        v_mul_u32_u24 v62, 1280, v61
        v_lshl_add_u32 v62, v6, 3, v62
        s_lshl_b32 s84, s{sIDX}, 5
        v_add_u32 v62, s84, v62
        buffer_load_dwordx2 v[120:121], v62, s[{sQ}:{sQ+3}], 0 offen
        v_lshlrev_b32 v42, 4, v61
        s_mov_b32 s89, {STBOX}
        """)
        self.poll([f"buffer_load_dwordx4 v[80:83], v42, s[{sWS}:{sWS+3}], s89 offen {self.get}"], [83], 44)
        a(f"""
        {NOTW}:
        s_waitcnt lgkmcnt(0)
        s_barrier
        s_cmp_lg_u32 s{sWAVE}, 4
        s_cbranch_scc1 {FIN}
        v_lshlrev_b32 v4, 4, v{vLANE}
        """)
        for wv in range(4):
            a(f"ds_read_b128 v[{128+4*wv}:{131+4*wv}], v4 offset:{BIG + 1024*wv}")
        a(f"""
        s_mov_b32 s86, 0xffff0000
        s_mov_b32 s84, 0xbfb8aa3b
        v_mul_f32 v42, s84, v82
        v_exp_f32 v42, v42
        v_lshlrev_b32 v116, 16, v120
        v_and_b32 v117, s86, v120
        v_add_f32 v42, 1.0, v42
        v_rcp_f32 v42, v42
        v_lshlrev_b32 v118, 16, v121
        v_and_b32 v119, s86, v121
        v_cvt_pk_bf16_f32 v42, v42, v42
        v_and_b32 v82, s86, v42
        """)
        for i in range(4):
            a(f"v_sub_f32 v{112+i}, v{116+i}, v80")
        self.rnd([112, 113, 114, 115], 42)
        for i in range(4):
            a(f"v_mul_f32 v{112+i}, v{112+i}, v81")
        self.rnd([112, 113, 114, 115], 42)
        a("s_waitcnt lgkmcnt(0)")
        for i in range(4):
            a(f"v_add_f32 v{128+i}, v{128+i}, v{132+i}\nv_add_f32 v{136+i}, v{136+i}, v{140+i}")
        for i in range(4):
            a(f"v_add_f32 v{128+i}, v{128+i}, v{136+i}")
        self.rnd([128, 129, 130, 131], 42)
        for i in range(4):
            a(f"v_mul_f32 v{128+i}, v{128+i}, v82")
        self.rnd([128, 129, 130, 131], 42)
        for i in range(4):
            a(f"v_add_f32 v{128+i}, v{128+i}, v{112+i}")
        self.rnd([128, 129, 130, 131], 42)
        for i in range(4):
            self.silu(128 + i, 132 + i)
        self.rnd([128, 129, 130, 131], 42)
        a(f"""
        v_lshrrev_b32 v4, 3, v61
        v_mul_u32_u24 v43, 10240, v4
        v_lshl_add_u32 v43, v6, 5, v43
        s_lshl_b32 s84, s{sIDX}, 7
        s_add_u32 s84, s84, {YMAIN}
        s_add_u32 s85, s84, 5120
        v_and_b32 v8, 1, v4
        v_lshrrev_b32 v4, 1, v4
        v_mul_u32_u24 v4, 10240, v4
        v_lshl_add_u32 v4, v8, 5, v4
        v_lshrrev_b32 v8, 1, v6
        v_lshl_add_u32 v4, v8, 7, v4
        v_and_b32 v8, 1, v6
        v_lshl_add_u32 v4, v8, 4, v4
        s_lshl_b32 s89, s{sIDX}, 8
        s_add_u32 s89, s89, {YEXT}
        """)
        loads = []
        for i in range(4):
            loads.append(f"buffer_load_dwordx4 v[{136+4*i}:{139+4*i}], v43, s[{sWS}:{sWS+3}], s{84 + (i & 1)} offen offset:{16*(i>>1)} {self.get}")
            loads.append(f"buffer_load_dwordx2 v[{152+2*i}:{153+2*i}], v4, s[{sWS}:{sWS+3}], s89 offen offset:{64*(i&1) + 8*(i>>1)} {self.get}")
        self.poll(loads, [139 + 4 * i for i in range(4)] + [153 + 2 * i for i in range(4)], 44)
        a(f"""
        v_bfe_u32 v4, v61, 1, 2
        v_cmp_eq_u32 s[82:83], 1, v4
        v_cmp_eq_u32 s[84:85], 2, v4
        v_cmp_eq_u32 s[88:89], 3, v4
        v_and_b32 v4, 1, v61
        v_lshlrev_b32 v4, 4, v4
        v_sub_u32 v4, 16, v4
        """)
        for i in range(4):
            y = 136 + 4 * i
            a(f"""
            v_cndmask_b32 v{y}, v{y}, v{y+1}, s[82:83]
            v_cndmask_b32 v{y}, v{y}, v{y+2}, s[84:85]
            v_cndmask_b32 v{y}, v{y}, v{152+2*i}, s[88:89]
            v_lshlrev_b32 v{y}, v4, v{y}
            v_and_b32 v{y}, s86, v{y}
            v_mul_f32 v{112+i}, v{112+i}, v{y}
            """)
        self.rnd([112, 113, 114, 115], 42)
        for i in range(4):
            a(f"v_mul_f32 v{112+i}, v{112+i}, v{128+i}")
        self.rnd([112, 113, 114, 115], 42)
        for i in range(4):
            a(f"v_add_f32 v{112+i}, v{112+i}, v{116+i}")
        srd(a, sOUT, 26, 2621440)
        a(f"""
        v_cvt_pk_bf16_f32 v112, v112, v113
        v_cvt_pk_bf16_f32 v113, v114, v115
        s_mov_b32 s82, 0x00ff00ff
        s_mov_b32 exec_lo, s82
        s_mov_b32 exec_hi, s82
        buffer_store_dwordx2 v[112:113], v62, s[{sOUT}:{sOUT+3}], 0 offen
        s_mov_b64 exec, -1
        {FIN}:
        """)
        self.stamp(8)

    def p3(self):
        a = self.a
        srd(a, sOUT, 26, 2621440)
        a(f"v_and_b32 v4, 7, v{vLANE}\nv_lshlrev_b32 v4, 3, v4\ns_mov_b32 s84, {IDXBOX}")
        self.poll([f"buffer_load_dwordx2 v[44:45], v4, s[{sWS}:{sWS+3}], s84 offen {self.get}"], [45], 42)
        a(f"""
        v_lshrrev_b32 v4, 3, v44
        v_and_b32 v6, 7, v44
        v_lshlrev_b32 v6, v6, 1
        v_cmp_eq_u32 vcc, s{sW}, v4
        v_cndmask_b32 v6, 0, v6, vcc
        v_or_b32_dpp v6, v6, v6 row_half_mirror row_mask:0xf bank_mask:0xf
        v_or_b32_dpp v6, v6, v6 quad_perm:[1,0,3,2] row_mask:0xf bank_mask:0xf
        v_or_b32_dpp v6, v6, v6 quad_perm:[2,3,0,1] row_mask:0xf bank_mask:0xf
        v_readfirstlane_b32 s{sSKIP}, v6
        v_lshlrev_b32 v4, 4, v0
        v_lshrrev_b32 v6, 2, v0
        v_lshlrev_b32 v6, 7, v6
        v_and_b32 v8, 3, v0
        v_lshl_add_u32 v6, v8, 3, v6
        s_mul_i32 s87, s{sW}, 10240
        s_add_u32 s88, s87, 5120
        s_add_u32 s84, s87, {YMAIN}
        s_add_u32 s85, s88, {YMAIN}
        s_lshr_b32 s89, s{sW}, 1
        s_mul_i32 s89, s89, 10240
        s_and_b32 s86, s{sW}, 1
        s_lshl_b32 s86, s86, 5
        s_add_u32 s89, s89, s86
        s_add_u32 s89, s89, {YEXT}
        s_mov_b32 s86, 0xffff0000
        """)
        self.stamp(9)
        self.poll([f"buffer_load_dwordx4 v[44:47], v4, s[{sWS}:{sWS+3}], s84 offen {self.get}",
                   f"buffer_load_dwordx4 v[48:51], v4, s[{sWS}:{sWS+3}], s85 offen {self.get}",
                   f"buffer_load_dwordx2 v[52:53], v6, s[{sWS}:{sWS+3}], s89 offen {self.get}",
                   f"buffer_load_dwordx2 v[54:55], v6, s[{sWS}:{sWS+3}], s89 offen offset:64 {self.get}"],
                  [47, 51, 53, 55], 42)
        self.stamp(10)
        pr = lambda b: f"v[{b}:{b+1}]"
        for r in range(8):
            d = r // 2
            ya, yb = (44 + d, 48 + d) if d < 3 else (52, 54)
            t = 56 + 2 * r
            if r % 2 == 0:
                a(f"v_lshlrev_b32 v{t}, 16, v{ya}\nv_lshlrev_b32 v{t+1}, 16, v{yb}")
            else:
                a(f"v_and_b32 v{t}, s86, v{ya}\nv_and_b32 v{t+1}, s86, v{yb}")
            L = self.lab("skip")
            a(f"""
            v_pk_fma_f32 {pr(t)}, {pr(t)}, {pr(vC+2*r)}, {pr(vX+2*r)}
            s_bitcmp1_b32 s{sSKIP}, {r}
            v_cvt_pk_bf16_f32 v{t}, v{t}, v{t+1}
            s_cbranch_scc1 {L}
            buffer_store_dword v{t}, v5, s[{sOUT}:{sOUT+3}], s{87 + r // 4} offen offset:{(r % 4) * 1280} nt
            {L}:
            """)
        self.stamp(11)

    def reload_rows(self):
        a = self.a
        a(f"""
        v_and_b32 v6, 7, v{vLANE}
        s_lshl_b32 s85, s{sW}, 3
        v_add_u32 v6, s85, v6
        v_lshlrev_b32 v6, 4, v6
        s_mov_b32 s85, {STBOX}
        buffer_load_dwordx4 v[100:103], v6, s[{sWS}:{sWS+3}], s85 offen
        s_mov_b32 s86, 0xffff0000
        s_mov_b32 s{sT}, 0x1234567
        s_waitcnt vmcnt(0)
        """)
        for r in range(8):
            a(f"v_lshlrev_b32 v{vX+2*r}, 16, v{vQ+r}\nv_and_b32 v{vX+2*r+1}, s86, v{vQ+r}")
        for r in range(8):
            a(f"v_readlane_b32 s{sST+2*r}, v100, {r}\nv_readlane_b32 s{sST+2*r+1}, v101, {r}")

    def finish(self, end, code_end):
        if self.stamps:
            self.a("s_memtime s[96:97]\ns_waitcnt lgkmcnt(0)\ns_sub_u32 s96, s96, s100\nv_writelane_b32 v254, s96, 12")
        self.stamps_out()
        if self.hold:
            L = self.lab("hold")
            self.a(f"s_waitcnt vmcnt(0)\n{L}:\ns_memrealtime s[96:97]\ns_waitcnt lgkmcnt(0)\ns_sub_u32 s96, s96, s98\ns_cmp_lt_u32 s96, {self.hold}\ns_cbranch_scc1 {L}")
        self.a(f"{end}:\ns_endpgm\n{code_end}:")
        lines, _ = hazard.fix(self.a.lines)
        self.a = Asm()
        return "\n".join(lines) + "\n"

    def fused_kernel(self):
        a = self.a
        self.prologue("L_end", "L_code_end")
        self.load_q()
        self.load_kv()
        self.role_loads((1, 2, 3))
        self.stats(20 + NROLE)
        self.kv(NROLE)
        c2, c3, c0, p3 = "L_c2", "L_c3", "L_c0", "L_p3"
        a(f"s_cmp_lg_u32 s{sCLS}, 1\ns_cbranch_scc1 {c2}")
        self.conv(True)
        a(f"s_branch {p3}\n{c2}:\ns_cmp_lg_u32 s{sCLS}, 2\ns_cbranch_scc1 {c3}")
        self.ffn1()
        a(f"s_branch {c0}\n{c3}:\ns_cmp_lg_u32 s{sCLS}, 3\ns_cbranch_scc1 {c0}")
        self.ffn2(True)
        a(f"s_branch {p3}\n{c0}:")
        self.p3_pre()
        a(f"{p3}:")
        self.p3()
        return self.finish("L_end", "L_code_end")

    def k1(self):
        self.prologue("L_end1", "L_code_end1")
        self.load_q()
        self.load_kv()
        self.stats(20)
        self.kv(0)
        return self.finish("L_end1", "L_code_end1")

    def k2(self):
        a = self.a
        self.prologue("L_end2", "L_code_end2")
        self.role_loads((1, 2))
        a(f"s_mov_b32 s{sT}, 0x1234567\ns_waitcnt vmcnt(0)\ns_cmp_lg_u32 s{sCLS}, 1\ns_cbranch_scc1 L_k2b")
        self.conv(False)
        a(f"s_branch L_k2e\nL_k2b:\ns_cmp_lg_u32 s{sCLS}, 2\ns_cbranch_scc1 L_k2e")
        self.ffn1()
        a("L_k2e:")
        return self.finish("L_end2", "L_code_end2")

    def k3(self):
        a = self.a
        self.prologue("L_end3", "L_code_end3")
        self.load_q()
        self.role_loads((3,))
        self.reload_rows()
        a(f"s_cmp_lg_u32 s{sCLS}, 3\ns_cbranch_scc1 L_k3b")
        self.ffn2(True)
        a("s_branch L_k3c\nL_k3b:")
        self.p3_pre()
        a("L_k3c:")
        self.p3()
        return self.finish("L_end3", "L_code_end3")


TARGET = '.amdgcn_target "amdgcn-amd-amdhsa--gfx950"\n'


def emit_fused(**kw):
    g = Gen(True, **kw)
    return (f"; @launch grid=(256,1,1) block=(320,1,1) lds={LDS_BYTES}\n" + TARGET
            + kernel_block(KNAME + "_kernel", g.fused_kernel(), 256))


def emit_multi(empties=0, **kw):
    g = Gen(False, **kw)
    head = "".join(f"; @launch kernel={k}_kernel grid=(256,1,1) block=(320,1,1) lds={LDS_BYTES}\n" for k in ("rows", "mix", "fin"))
    head += "; @launch kernel=nop_kernel grid=(256,1,1) block=(64,1,1) lds=0\n" * empties
    text = head + TARGET + kernel_block("rows_kernel", g.k1(), 256) + kernel_block("mix_kernel", g.k2(), 256) + kernel_block("fin_kernel", g.k3(), 256)
    if empties:
        text += kernel_block("nop_kernel", "    s_endpgm\n", 8)
    return text


if __name__ == "__main__":
    open("multi.s", "w").write(emit_multi())
    open("multi_e2.s", "w").write(emit_multi(empties=2))
    open("fused.s", "w").write(emit_fused())
    open("fused_st.s", "w").write(emit_fused(stamps=True))
    open("fused_hold60.s", "w").write(emit_fused(hold=6000))
    open("fused_hold30.s", "w").write(emit_fused(hold=3000))
    open("fused_pl.s", "w").write(emit_fused(ld=""))
```

```python
import sys
from gen import Asm, kernel_block, KNAME
import hazard

KV = 0x000000
YMAIN = 0x400000
YEXT = 0x700000
RBOX = 0x880000
STBOX = 0x890000
HBOX = 0x8A0000
IDXBOX = 0x8B0000
EPOCH = 0x8B1000
HINT1 = 0x8C0000
HINT2 = 0x8D0000
STAMPS = 0x900000
WS_USED = 0xA00000

HC_K = 4160
HC_S = 4 * HC_K
RED = 0
SEL = 640
SEL_G = SEL
SEL_C = SEL + 64
SEL_N = SEL + 64 + 80
SEL_T = SEL + 64 + 96
SKIP = SEL_T + 256
BIG = 1280
XB = BIG
XS = 4576
HC0 = 19712
LDS_BYTES = HC0 + 4 * HC_S + 1024

vTID, vLANE = 0, 1
vX, vC = 10, 26
vQ, vK, vV, vWR, vSH = 42, 50, 61, 69, 70
vR = 128
sQ, sKK, sVV, sOUT, sWS, sRA, sRB = 32, 36, 40, 44, 48, 52, 56
sW, sWAVE, sT, sIDX, sCLS = 60, 61, 62, 63, 64
sST = 66
sSKIP = 65
SPIN = 400000


def srd(a, s, lo, size):
    a(f"s_mov_b32 s{s}, s{lo}\ns_mov_b32 s{s+1}, s{lo+1}\ns_mov_b32 s{s+2}, {size}\ns_mov_b32 s{s+3}, 0x20000")


class Gen:
    def __init__(self, fused=True, stamps=False, ld="nt", hold=0, touch="", wld="", nap=1, report=None, probe=None):
        self.probe = probe
        self.report = report
        hold = 3000 if report is not None else hold
        self.hold, self.touch_fl, self.wld, self.nap = hold, touch, wld, nap
        self.fused, self.stamps, self.ld = fused, stamps, ld
        self.a = Asm()
        self.uid = 0
        self.pub = "sc1" if fused else ""
        self.get = "sc1" if fused else ""

    def lab(self, base):
        self.uid += 1
        return f"L_{base}_{self.uid}"

    def stamp(self, i):
        if self.report == i:
            self.a("s_memrealtime s[96:97]\ns_waitcnt lgkmcnt(0)\ns_sub_u32 s96, s96, s98\ns_mul_i32 s101, s96, 20")
        if self.stamps:
            self.a(f"s_memrealtime s[96:97]\ns_waitcnt lgkmcnt(0)\nv_writelane_b32 v254, s96, {i}")

    def stamps_out(self):
        if self.stamps:
            L = self.lab("nost")
            self.a(f"""
            s_cmp_lg_u32 s{sWAVE}, 0
            s_cbranch_scc1 {L}
            s_lshl_b32 s96, s{sW}, 8
            s_add_u32 s96, s96, {STAMPS}
            v_lshlrev_b32 v253, 2, v{vLANE}
            buffer_store_dword v254, v253, s[{sWS}:{sWS+3}], s96 offen
            {L}:
            """)

    def prologue(self, end, code_end):
        a = self.a
        L = self.lab("pc")
        a(f"""
        s_cmp_ge_u32 s2, 256
        s_cbranch_scc1 {end}
        {"s_memrealtime s[98:99]" if self.hold else ""}
        {"s_mov_b32 s101, 0" if self.hold else ""}
        {"s_memtime s[100:101]" if self.stamps else ""}
        s_load_dwordx16 s[4:19], s[0:1], 0
        s_load_dwordx8 s[20:27], s[0:1], 64
        s_load_dwordx4 s[28:31], s[0:1], 96
        s_getpc_b64 s[82:83]
        {L}:
        v_lshlrev_b32 v2, 7, v0
        v_min_u32 v2, {code_end}-{L}-4, v2
        global_load_dword v3, v2, s[82:83]
        v_lshrrev_b32 v4, 6, v0
        v_and_b32 v{vLANE}, 63, v0
        v_lshlrev_b32 v5, 2, v0
        v_readfirstlane_b32 s{sWAVE}, v4
        s_mov_b32 s{sW}, s2
        s_and_b32 s84, s2, 7
        s_lshr_b32 s85, s2, 3
        s_mul_i32 s86, s84, 20
        s_add_u32 s{sIDX}, s86, s85
        s_mov_b32 s{sCLS}, 1
        s_mul_i32 s86, s84, 6
        s_add_u32 s86, s86, s85
        s_sub_u32 s86, s86, 20
        s_cmp_ge_u32 s85, 20
        s_cselect_b32 s{sIDX}, s86, s{sIDX}
        s_cselect_b32 s{sCLS}, 2, s{sCLS}
        s_mul_i32 s86, s84, 5
        s_add_u32 s86, s86, s85
        s_sub_u32 s86, s86, 26
        s_cmp_ge_u32 s85, 26
        s_cselect_b32 s{sIDX}, s86, s{sIDX}
        s_cselect_b32 s{sCLS}, 3, s{sCLS}
        s_cmp_ge_u32 s85, 31
        s_cselect_b32 s{sCLS}, 0, s{sCLS}
        s_mul_i32 s87, s2, 10240
        s_add_u32 s88, s87, 5120
        """)
        if self.stamps:
            a("v_mov_b32 v254, 0")
            self.stamp(0)
        a("s_waitcnt lgkmcnt(0)")
        if self.probe:
            ptr, off, per, fl = self.probe
            a(f"""
            s_mul_i32 s84, s2, {per}
            s_add_u32 s84, s84, {off}
            s_add_u32 s84, s{ptr}, s84
            s_addc_u32 s85, s{ptr + 1}, 0
            v_lshlrev_b32 v6, 4, v0
            s_memrealtime s[94:95]
            s_waitcnt vmcnt(0) lgkmcnt(0)
            """)
            for i in range(per // 5120):
                a(f"global_load_dwordx4 v[{64+4*i}:{67+4*i}], v6, s[84:85] {fl}\nv_add_u32 v6, 5120, v6")
            a("s_waitcnt vmcnt(0)\ns_memrealtime s[96:97]\ns_waitcnt lgkmcnt(0)\ns_sub_u32 s96, s96, s94\ns_mul_i32 s101, s96, 20")
        srd(a, sQ, 4, 2621440)
        srd(a, sWS, 30, WS_USED)
        if self.fused:
            a(f"v_mov_b32 v6, {EPOCH}\nbuffer_load_dword v7, v6, s[{sWS}:{sWS+3}], 0 offen sc1")

    def load_q(self):
        a = self.a
        for r in range(8):
            a(f"buffer_load_dword v{vQ+r}, v5, s[{sQ}:{sQ+3}], s{87 + r // 4} offen offset:{(r % 4) * 1280} {self.ld}")
        a(f"global_load_dword v{vWR}, v5, s[18:19]")

    def load_kv(self):
        a = self.a
        srd(a, sKK, 6, 2621440)
        srd(a, sVV, 8, 2621440)
        a(f"""
        s_sub_u32 s89, s87, 3840
        s_cmp_eq_u32 s{sW}, 0
        s_cselect_b32 s89, 0, s89
        s_cselect_b32 s90, 0, -1
        v_lshlrev_b32 v6, 4, v0
        s_barrier
        global_load_dwordx4 v[{vSH}:{vSH+3}], v6, s[10:11]
        """)
        for r in range(3):
            a(f"buffer_load_dword v{vK+r}, v5, s[{sKK}:{sKK+3}], s89 offen offset:{r * 1280} {self.ld}")
        for r in range(8):
            a(f"buffer_load_dword v{vK+3+r}, v5, s[{sKK}:{sKK+3}], s{87 + r // 4} offen offset:{(r % 4) * 1280} {self.ld}")
        for r in range(8):
            a(f"buffer_load_dword v{vV+r}, v5, s[{sVV}:{sVV+3}], s{87 + r // 4} offen offset:{(r % 4) * 1280} {self.ld}")

    def touch(self):
        a = self.a
        L2, L3, L4, GO = (self.lab(x) for x in ("t_gate", "t_up", "t_down", "t_go"))
        a(f"""
        s_and_b32 s84, s2, 7
        s_lshr_b32 s85, s2, 3
        s_mov_b32 s{sRA+3}, 0x20000
        s_cmp_ge_u32 s85, 8
        s_cbranch_scc1 {L2}
        s_mov_b32 s{sRA}, s12
        s_mov_b32 s{sRA+1}, s13
        s_mov_b32 s{sRA+2}, 2621440
        s_mul_i32 s91, s84, 327680
        s_mov_b32 s92, 0x10000
        s_mov_b32 s93, 1
        s_movk_i32 s94, 128
        s_branch {GO}
        {L2}:
        s_cmp_ge_u32 s85, 20
        s_cbranch_scc1 {L4}
        s_cmp_ge_u32 s85, 14
        s_cselect_b32 s{sRA}, s22, s20
        s_cselect_b32 s{sRA+1}, s23, s21
        s_cselect_b32 s91, 14, 8
        s_sub_u32 s85, s85, s91
        s_mov_b32 s{sRA+2}, 1966080
        s_mul_i32 s91, s84, 384
        s_movk_i32 s92, 21846
        s_mov_b32 s93, 3
        s_movk_i32 s94, 3072
        s_branch {GO}
        {L4}:
        s_mov_b32 s{sRA}, s24
        s_mov_b32 s{sRA+1}, s25
        s_mov_b32 s{sRA+2}, 1966080
        s_sub_u32 s85, s85, 20
        s_mul_i32 s91, s84, 160
        s_andn2_b32 s91, s91, 127
        s_mov_b32 s92, 0x8000
        s_mov_b32 s93, 2
        s_movk_i32 s94, 1280
        {GO}:
        s_mul_i32 s85, s85, 320
        v_add_u32 v4, s85, v0
        v_mul_lo_u32 v6, v4, s92
        v_lshrrev_b32 v6, 16, v6
        v_mul_u32_u24 v8, s93, v6
        v_sub_u32 v4, v4, v8
        v_mul_u32_u24 v6, s94, v6
        v_lshl_add_u32 v4, v4, 7, v6
        v_add_u32 v4, s91, v4
        buffer_load_dword v9, v4, s[{sRA}:{sRA+3}], 0 offen {self.touch_fl}
        """)

    def wait_vm(self, n, extra=2):
        A, B = self.lab("wv"), self.lab("wv")
        self.a(f"""
        s_cmp_eq_u32 s{sWAVE}, 1
        s_cbranch_scc1 {A}
        s_waitcnt vmcnt({n})
        {A}:
        s_waitcnt vmcnt({n + 2})
        """)

    def conv_loads(self):
        a, ld = self.a, self.wld
        a(f"""
        s_lshr_b32 s91, s{sIDX}, 1
        s_lshl_b32 s91, s91, 3
        s_and_b32 s92, s{sIDX}, 1
        s_add_u32 s91, s91, s92
        s_lshl_b32 s92, s{sWAVE}, 1
        s_add_u32 s91, s91, s92
        s_lshl_b32 s92, s91, 1
        s_and_b32 s93, s92, 2
        s_lshl_b32 s93, s93, 3
        s_andn2_b32 s92, s92, 3
        s_load_dword s94, s[14:15], s92
        s_lshl_b32 s91, s91, 12
        """)
        srd(a, sRA, 12, 2621440)
        a(f"""
        v_lshlrev_b32 v6, 4, v{vLANE}
        v_add_u32 v6, s91, v6
        v_subrev_u32 v8, 8, v6
        v_max_i32 v4, 0, v8
        """)
        for it in range(4):
            a(f"buffer_load_dwordx4 v[{vR+8*it+4}:{vR+8*it+7}], v6, s[{sRA}:{sRA+3}], 0 offen offset:{it*1024} {ld}")
            if it == 0:
                a(f"buffer_load_dwordx2 v[{vR+2}:{vR+3}], v4, s[{sRA}:{sRA+3}], 0 offen {ld}")
            else:
                a(f"buffer_load_dwordx2 v[{vR+8*it+2}:{vR+8*it+3}], v6, s[{sRA}:{sRA+3}], 0 offen offset:{it*1024-8} {ld}")

    def ffn1_loads(self):
        a, ld = self.a, self.wld
        srd(a, sRA, 20, 1966080)
        srd(a, sRB, 22, 1966080)
        a(f"""
        v_lshrrev_b32 v6, 2, v0
        v_mul_u32_u24 v6, 3072, v6
        v_and_b32 v8, 3, v0
        v_lshl_add_u32 v6, v8, 4, v6
        s_lshl_b32 s91, s{sIDX}, 6
        """)
        for i in range(8):
            a(f"buffer_load_dwordx4 v[{vR+4*i}:{vR+4*i+3}], v6, s[{sRA}:{sRA+3}], s91 offen {ld}")
            a(f"buffer_load_dwordx4 v[{vR+32+4*i}:{vR+32+4*i+3}], v6, s[{sRB}:{sRB+3}], s91 offen {ld}")
            if i < 7:
                a("s_add_u32 s91, s91, 245760")

    def ffn2_loads(self):
        a, ld = self.a, self.wld
        srd(a, sRA, 24, 1966080)
        a(f"""
        v_lshrrev_b32 v6, 1, v0
        v_mul_u32_u24 v6, 1280, v6
        v_and_b32 v8, 1, v0
        v_lshl_add_u32 v6, v8, 4, v6
        s_lshl_b32 s91, s{sIDX}, 5
        v_add_u32 v6, s91, v6
        """)
        for i in range(10):
            a(f"buffer_load_dwordx4 v[{vR+4*i}:{vR+4*i+3}], v6, s[{sRA}:{sRA+3}], 0 offen {ld}")
            if i < 9:
                a("v_add_u32 v6, 204800, v6")

    def hint(self, box, idx, wave):
        L = self.lab("nohint")
        self.a(f"""
        s_cmp_lg_u32 s{sWAVE}, {wave}
        s_cbranch_scc1 {L}
        s_lshl_b32 s84, s{idx}, 6
        s_add_u32 s84, s84, {box}
        v_mov_b32 v4, s84
        v_mov_b32 v6, s{sT}
        s_mov_b64 exec, 1
        buffer_store_dword v6, v4, s[{sWS}:{sWS+3}], 0 offen sc1
        s_mov_b64 exec, -1
        {L}:
        """)

    def stats(self, after):
        a = self.a
        S1, S2, S3, WS_ = 74, 82, 90, 98
        a(f"s_waitcnt vmcnt({after})")
        self.stamp(1)
        a("s_mov_b32 s84, 0x3f803f80")
        if self.fused:
            a(f"v_readfirstlane_b32 s85, v7\ns_mul_i32 s85, s85, 0x41c64e6d\ns_add_u32 s{sT}, s85, 0x3039")
        else:
            a(f"s_mov_b32 s{sT}, 0x1234567")
        for r in range(8):
            a(f"""
            v_dot2_f32_bf16 v{S1+r}, v{vQ+r}, s84, 0
            v_dot2_f32_bf16 v{S2+r}, v{vQ+r}, v{vQ+r}, 0
            v_dot2_f32_bf16 v{S3+r}, v{vQ+r}, v{vWR}, 0
            """)
        a(f"v_dot2_f32_bf16 v{WS_}, v{vWR}, s84, 0")
        for r in range(4):
            for b in (S1, S2, S3):
                a(f"v_permlane32_swap_b32 v{b+r}, v{b+r+4}")
        a(f"v_mov_b32 v{WS_+1}, v{WS_}")
        for r in range(4):
            for b in (S1, S2, S3):
                a(f"v_add_f32 v{b+r}, v{b+r}, v{b+r+4}")
        a(f"v_permlane32_swap_b32 v{WS_}, v{WS_+1}")
        for r in range(2):
            for b in (S1, S2, S3):
                a(f"v_permlane16_swap_b32 v{b+r}, v{b+r+2}")
        a(f"v_add_f32 v{WS_}, v{WS_}, v{WS_+1}")
        for r in range(2):
            for b in (S1, S2, S3):
                a(f"v_add_f32 v{b+r}, v{b+r}, v{b+r+2}")
        a(f"v_mov_b32 v{WS_+1}, v{WS_}")
        T = 100
        for k, b in enumerate((S1, S2, S3)):
            a(f"v_add_f32_dpp v{T+k}, v{b}, v{b} row_ror:8 row_mask:0xf bank_mask:0x3")
        a(f"v_permlane16_swap_b32 v{WS_}, v{WS_+1}")
        for k, b in enumerate((S1, S2, S3)):
            a(f"v_add_f32_dpp v{T+k}, v{b+1}, v{b+1} row_ror:8 row_mask:0xf bank_mask:0xc")
        a(f"v_add_f32 v{T+3}, v{WS_}, v{WS_+1}")
        a(f"""
        v_lshrrev_b32 v4, 3, v{vLANE}
        v_lshlrev_b32 v4, 4, v4
        v_add_f32_dpp v{T+3}, v{T+3}, v{T+3} row_ror:8 row_mask:0xf bank_mask:0xf
        """)
        for mod in ("row_half_mirror", "quad_perm:[1,0,3,2]", "quad_perm:[2,3,0,1]"):
            for k in range(4):
                a(f"v_add_f32_dpp v{T+k}, v{T+k}, v{T+k} {mod} row_mask:0xf bank_mask:0xf")
        a(f"""
        s_lshl_b32 s85, s{sWAVE}, 7
        s_add_u32 s85, s85, {RED}
        v_add_u32 v4, s85, v4
        s_mov_b32 s92, 0x01010101
        s_mov_b32 exec_lo, s92
        s_mov_b32 exec_hi, s92
        ds_write_b128 v4, v[{T}:{T+3}]
        s_mov_b64 exec, -1
        v_and_b32 v6, 7, v{vLANE}
        v_lshlrev_b32 v4, 4, v6
        s_waitcnt lgkmcnt(0)
        s_barrier
        """)
        P = 74
        for wv in range(5):
            a(f"ds_read_b128 v[{P+4*wv}:{P+4*wv+3}], v4 offset:{RED + 128*wv}")
        a(f"""
        s_lshl_b32 s85, s{sW}, 3
        v_add_u32 v8, s85, v6
        v_sub_u32 v104, 2047, v8
        s_mov_b32 s84, 0x3acccccd
        s_mov_b32 s86, 0xffff0000
        s_waitcnt lgkmcnt(0)
        v_pk_add_f32 v[{P}:{P+1}], v[{P}:{P+1}], v[{P+4}:{P+5}]
        v_pk_add_f32 v[{P+2}:{P+3}], v[{P+2}:{P+3}], v[{P+6}:{P+7}]
        v_pk_add_f32 v[{P+8}:{P+9}], v[{P+8}:{P+9}], v[{P+12}:{P+13}]
        v_pk_add_f32 v[{P+10}:{P+11}], v[{P+10}:{P+11}], v[{P+14}:{P+15}]
        v_pk_add_f32 v[{P}:{P+1}], v[{P}:{P+1}], v[{P+16}:{P+17}]
        v_pk_add_f32 v[{P+2}:{P+3}], v[{P+2}:{P+3}], v[{P+18}:{P+19}]
        v_pk_add_f32 v[{P}:{P+1}], v[{P}:{P+1}], v[{P+8}:{P+9}]
        v_pk_add_f32 v[{P+2}:{P+3}], v[{P+2}:{P+3}], v[{P+10}:{P+11}]
        v_pk_mul_f32 v[{P}:{P+1}], v[{P}:{P+1}], s[84:85] op_sel_hi:[1,0]
        v_fma_f32 v{P+1}, -v{P}, v{P}, v{P+1}
        v_max_f32 v{P+1}, 0, v{P+1}
        v_cvt_pk_bf16_f32 v{P+4}, v{P}, v{P+1}
        v_lshlrev_b32 v100, 16, v{P+4}
        v_and_b32 v{P+1}, s86, v{P+4}
        v_add_f32 v{P+1}, 0x3727c5ac, v{P+1}
        v_cvt_pk_bf16_f32 v{P+4}, v{P+1}, v{P+1}
        v_and_b32 v{P+1}, s86, v{P+4}
        v_sqrt_f32 v{P+1}, v{P+1}
        v_fma_f32 v{P+2}, -v100, v{P+3}, v{P+2}
        v_cvt_pk_bf16_f32 v{P+4}, v{P+1}, v{P+1}
        v_and_b32 v{P+1}, s86, v{P+4}
        v_rcp_f32 v101, v{P+1}
        v_mov_b32 v103, s{sT}
        v_mul_f32 v{P+2}, v{P+2}, v101
        v_cvt_pk_bf16_f32 v{P+4}, v{P+2}, v{P+2}
        v_and_b32 v102, s86, v{P+4}
        v_ashrrev_i32 v{P+5}, 31, v102
        v_or_b32 v{P+5}, 0x80000000, v{P+5}
        v_xor_b32 v{P+5}, v102, v{P+5}
        v_and_or_b32 v104, v{P+5}, s86, v104
        v_mov_b32 v105, s{sT}
        """)
        L = self.lab("nopub")
        a(f"""
        s_cmp_lg_u32 s{sWAVE}, 1
        s_cbranch_scc1 {L}
        v_lshlrev_b32 v4, 3, v8
        v_lshlrev_b32 v6, 4, v8
        s_mov_b32 s84, {RBOX}
        s_mov_b32 s85, {STBOX}
        s_mov_b64 exec, 0xff
        buffer_store_dwordx2 v[104:105], v4, s[{sWS}:{sWS+3}], s84 offen {self.pub}
        buffer_store_dwordx4 v[100:103], v6, s[{sWS}:{sWS+3}], s85 offen {self.pub}
        s_mov_b64 exec, -1
        {L}:
        """)
        for r in range(8):
            a(f"v_readlane_b32 s{sST+2*r}, v100, {r}\nv_readlane_b32 s{sST+2*r+1}, v101, {r}")
        self.stamp(2)

    def kv(self):
        a = self.a
        KF, SH, ACC, VF = 74, 96, 104, 120
        G = 42
        a("s_mov_b32 s86, 0xffff0000")
        for r in range(8):
            a(f"v_lshlrev_b32 v{vX+2*r}, 16, v{vQ+r}\nv_and_b32 v{vX+2*r+1}, s86, v{vQ+r}")
        self.wait_vm(8)
        self.touch()
        for j in range(4):
            for c in range(2):
                src = vSH + 2 * c + j // 2
                a(f"v_lshlrev_b32 v{SH+2*j+c}, 16, v{src}" if j % 2 == 0 else f"v_and_b32 v{SH+2*j+c}, s86, v{src}")
        for r in range(3):
            a(f"v_and_b32 v{vK+r}, s90, v{vK+r}")
        for r in range(11):
            a(f"v_lshlrev_b32 v{KF+2*r}, 16, v{vK+r}\nv_and_b32 v{KF+2*r+1}, s86, v{vK+r}")
        pr = lambda b: f"v[{b}:{b+1}]"
        for r in range(8):
            a(f"v_pk_mul_f32 {pr(ACC+2*r)}, {pr(KF+2*r)}, {pr(SH+6)}")
        for j in (2, 1, 0):
            for r in range(8):
                a(f"v_pk_fma_f32 {pr(ACC+2*r)}, {pr(KF+2*(r+3-j))}, {pr(SH+2*j)}, {pr(ACC+2*r)}")
        a(f"""
        v_lshrrev_b32 v4, 2, v0
        v_mul_u32_u24 v4, 49152, v4
        v_and_b32 v6, 3, v0
        v_lshl_add_u32 v4, v6, 4, v4
        s_lshl_b32 s84, s{sW}, 6
        s_add_u32 s85, s84, 16384
        s_add_u32 s89, s84, 32768
        v_mov_b32 v{G+3}, s{sT}
        v_mov_b32 v{G+7}, s{sT}
        v_mov_b32 v{G+9}, s{sT}
        v_mov_b32 v{G+11}, s{sT}
        """)
        self.wait_vm(1)
        self.stamp(3)
        NC = self.lab("noconv")
        a(f"s_cmp_lg_u32 s{sCLS}, 1\ns_cbranch_scc1 {NC}\ns_cmp_eq_u32 s{sWAVE}, 4\ns_cbranch_scc1 {NC}\nv_mov_b32 v2, v4")
        self.conv_loads()
        a(f"v_mov_b32 v4, v2\n{NC}:")
        for r in range(8):
            a(f"v_lshlrev_b32 v{VF+2*(r%4)}, 16, v{vV+r}\nv_and_b32 v{VF+2*(r%4)+1}, s86, v{vV+r}")
            a(f"v_pk_mul_f32 {pr(ACC+2*r)}, {pr(ACC+2*r)}, {pr(VF+2*(r%4))}")
        for c in range(2):
            for d in range(4):
                dst = G + 4 * c + d if d < 3 else G + 8 + 2 * c
                a(f"v_cvt_pk_bf16_f32 v{dst}, v{ACC+2*(7-2*d)+c}, v{ACC+2*(6-2*d)+c}")
        a(f"""
        buffer_store_dwordx4 v[{G}:{G+3}], v4, s[{sWS}:{sWS+3}], s84 offen {self.pub}
        buffer_store_dwordx4 v[{G+4}:{G+7}], v4, s[{sWS}:{sWS+3}], s85 offen {self.pub}
        buffer_store_dwordx4 v[{G+8}:{G+11}], v4, s[{sWS}:{sWS+3}], s89 offen {self.pub}
        """)
        self.stamp(4)

    def p3_pre(self):
        a = self.a
        pr = lambda b: f"v[{b}:{b+1}]"
        T = 200
        a("s_mov_b32 s86, 0xffff0000\ns_mov_b32 s84, 0xbfb8aa3b")
        for h in range(2):
            rows = range(4 * h, 4 * h + 4)
            t = lambda r, k: T + 6 * (r % 4) + k
            for r in rows:
                a(f"v_pk_add_f32 {pr(t(r,0))}, {pr(vX+2*r)}, s[{sST+2*r}:{sST+2*r+1}] op_sel_hi:[1,0] neg_lo:[0,1] neg_hi:[0,1]")
            for r in rows:
                a(f"v_cvt_pk_bf16_f32 v{t(r,2)}, v{t(r,0)}, v{t(r,1)}")
            for r in rows:
                a(f"v_lshlrev_b32 v{t(r,0)}, 16, v{t(r,2)}\nv_and_b32 v{t(r,1)}, s86, v{t(r,2)}")
            for r in rows:
                a(f"v_pk_mul_f32 {pr(t(r,0))}, {pr(t(r,0))}, s[{sST+2*r}:{sST+2*r+1}] op_sel:[0,1] op_sel_hi:[1,1]")
            for r in rows:
                a(f"v_cvt_pk_bf16_f32 v{t(r,2)}, v{t(r,0)}, v{t(r,1)}")
            for r in rows:
                a(f"v_lshlrev_b32 v{t(r,0)}, 16, v{t(r,2)}\nv_and_b32 v{t(r,1)}, s86, v{t(r,2)}")
            for r in rows:
                a(f"v_pk_mul_f32 {pr(t(r,2))}, {pr(t(r,0))}, s[84:85] op_sel_hi:[1,0]")
            for r in rows:
                a(f"v_exp_f32 v{t(r,2)}, v{t(r,2)}\nv_exp_f32 v{t(r,3)}, v{t(r,3)}")
            for r in rows:
                a(f"v_pk_add_f32 {pr(t(r,2))}, {pr(t(r,2))}, 1.0 op_sel_hi:[1,0]")
            for r in rows:
                a(f"v_rcp_f32 v{t(r,2)}, v{t(r,2)}\nv_rcp_f32 v{t(r,3)}, v{t(r,3)}")
            for r in rows:
                a(f"v_pk_mul_f32 {pr(t(r,2))}, {pr(t(r,2))}, {pr(t(r,0))}")
            for r in rows:
                a(f"v_cvt_pk_bf16_f32 v{t(r,4)}, v{t(r,2)}, v{t(r,3)}")
            for r in rows:
                a(f"v_lshlrev_b32 v{t(r,2)}, 16, v{t(r,4)}\nv_and_b32 v{t(r,3)}, s86, v{t(r,4)}")
            for r in rows:
                a(f"v_pk_mul_f32 {pr(vC+2*r)}, {pr(t(r,0))}, {pr(t(r,2))}")

    def poll(self, loads, tags, tmp, nap=0):
        a = self.a
        L, D = self.lab("poll"), self.lab("polled")
        a(f"s_mov_b32 s95, 0\n{L}:")
        for ld in loads:
            a(ld)
        a("s_waitcnt vmcnt(0)")
        if not self.fused:
            return
        tags = list(tags)
        a(f"v_xor_b32 v{tmp}, s{sT}, v{tags[0]}")
        for t in tags[1:]:
            a(f"v_xor_b32 v{tmp+1}, s{sT}, v{t}\nv_or_b32 v{tmp}, v{tmp}, v{tmp+1}")
        a(f"""
        v_cmp_ne_u32 vcc, 0, v{tmp}
        s_add_u32 s95, s95, 1
        s_cmp_gt_u32 s95, {SPIN}
        s_cbranch_scc1 {D}
        s_cbranch_vccz {D}
        {f"s_sleep {nap}" if nap else ""}
        s_branch {L}
        {D}:
        """)

    def conv(self, p3):
        a = self.a
        ACC = 224 - 32
        SET = [(64, 96), (128, 160)]
        W4 = self.lab("conv_w4")
        self.p3_pre()
        a(f"""
        v_mov_b32 v44, 0
        v_mov_b32 v45, 0
        v_mov_b32 v46, 0
        v_mov_b32 v47, 0
        v_lshrrev_b32 v4, 5, v0
        v_mul_u32_u24 v4, {XS}, v4
        v_and_b32 v6, 31, v0
        v_min_u32 v6, 29, v6
        v_lshl_add_u32 v4, v6, 4, v4
        v_cmp_gt_u32 vcc, 128, v0
        s_and_saveexec_b64 s[82:83], vcc
        ds_write_b128 v4, v[44:47] offset:{XB}
        s_mov_b64 exec, s[82:83]
        s_cmp_eq_u32 s{sWAVE}, 4
        s_cbranch_scc1 {W4}
        s_mul_i32 s84, s{sWAVE}, {HC_S}
        s_add_u32 s84, s84, {HC0}
        v_and_b32 v6, 7, v{vLANE}
        v_lshrrev_b32 v4, 1, v6
        v_mul_u32_u24 v4, {HC_K}, v4
        v_and_b32 v6, 1, v6
        v_lshl_add_u32 v4, v6, 4, v4
        v_add_u32 v4, s84, v4
        ds_write_b128 v4, v[44:47]
        v_lshlrev_b32 v4, 4, v{vLANE}
        v_add_u32 v4, s84, v4
        v_cmp_ne_u32 vcc, 0, v{vLANE}
        s_waitcnt vmcnt(3)
        v_cndmask_b32 v{vR+2}, 0, v{vR+2}, vcc
        v_cndmask_b32 v{vR+3}, 0, v{vR+3}, vcc
        """)
        for it in range(4):
            W = vR + 8 * it + 4
            O = 48 + 12 * (it % 2)
            a(f"ds_write_b128 v4, v[{W}:{W+3}] offset:{32 + 1024*it}")
            for d in range(4):
                a(f"v_alignbyte_b32 v{O+d}, v{W+d}, v{W+d-1}, 2")
            for d in range(4):
                a(f"v_mov_b32 v{O+4+d}, v{W+d-1}")
            for d in range(4):
                a(f"v_alignbyte_b32 v{O+8+d}, v{W+d-1}, v{W+d-2}, 2")
            for k in range(1, 4):
                a(f"ds_write_b128 v4, v[{O+4*(k-1)}:{O+4*(k-1)+3}] offset:{k*HC_K + 32 + 1024*it}")
        a(f"""
        s_waitcnt lgkmcnt(0)
        s_lshr_b32 s94, s94, s93
        s_and_b32 s94, s94, 0xffff
        v_lshrrev_b32 v6, 4, v{vLANE}
        v_and_b32 v8, 15, v{vLANE}
        v_lshlrev_b32 v4, 3, v6
        v_add_u32 v4, v4, v8
        v_sub_u32 v4, 15, v4
        v_and_b32 v42, 1, v4
        v_lshlrev_b32 v42, 4, v42
        v_lshlrev_b32 v42, v42, s94
        v_ashrrev_i32 v4, 1, v4
        """)
        for d in range(4):
            a(f"v_cmp_eq_u32 vcc, {d}, v4\nv_cndmask_b32 v{224+d}, 0, v42, vcc")
        a(f"""
        v_add_u32 v4, 1, v8
        v_sub_u32 v42, 0, v4
        v_and_b32 v42, 3, v42
        v_add_u32 v4, v4, v42
        v_lshl_add_u32 v4, v6, 3, v4
        v_mul_u32_u24 v42, {HC_K}, v42
        v_lshl_add_u32 v4, v4, 1, v42
        v_add_u32 v228, s84, v4
        v_lshlrev_b32 v4, 1, v8
        v_sub_u32 v4, v4, v6
        v_add_u32 v4, 31, v4
        s_mul_i32 s84, s{sWAVE}, {XS}
        s_add_u32 s84, s84, {XB}
        v_lshl_add_u32 v229, v4, 4, s84
        """)
        self.stamp(5)
        a(f"""
        s_lshr_b32 s84, s{sIDX}, 1
        s_mul_i32 s84, s84, 49152
        s_and_b32 s85, s{sIDX}, 1
        s_lshl_b32 s86, s85, 14
        s_add_u32 s86, s86, s84
        s_lshl_b32 s85, s85, 3
        s_add_u32 s85, s85, s84
        s_add_u32 s85, s85, 32768
        v_lshlrev_b32 v4, 4, v0
        v_add_u32 v6, s85, v4
        v_add_u32 v4, s86, v4
        s_movk_i32 s84, 0x1000
        s_movk_i32 s85, 0x2000
        s_movk_i32 s86, 0x3000
        """)
        so = ["0", "s84", "s85", "s86"]
        loads = []
        for k in range(4):
            loads.append(f"buffer_load_dwordx4 v[{64+4*k}:{67+4*k}], v4, s[{sWS}:{sWS+3}], {so[k]} offen {self.get}")
            loads.append(f"buffer_load_dwordx2 v[{80+2*k}:{81+2*k}], v6, s[{sWS}:{sWS+3}], {so[k]} offen {self.get}")
        self.poll(loads, [67 + 4 * k for k in range(4)] + [81 + 2 * k for k in range(4)], 42)
        self.stamp(6)
        a(f"""
        v_and_b32 v4, 3, v0
        v_mul_u32_u24 v4, {XS}, v4
        v_lshrrev_b32 v6, 2, v0
        v_lshl_add_u32 v4, v6, 4, v4
        v_add_u32 v4, {XB + 480}, v4
        """)
        for k in range(4):
            a(f"v_mov_b32 v{67+4*k}, v{80+2*k}")
        for k in range(4):
            a(f"ds_write_b128 v4, v[{64+4*k}:{67+4*k}] offset:{1024*k}")
        a(f"{W4}:\ns_waitcnt lgkmcnt(0)\ns_barrier")
        self.stamp(14)
        M4 = self.lab("conv_m4")
        a(f"s_cmp_eq_u32 s{sWAVE}, 4\ns_cbranch_scc1 {M4}")

        def reads(s):
            A, B = SET[s]
            out = []
            for i in range(8):
                out.append(f"ds_read_b128 v[{B+4*(7-i)}:{B+4*(7-i)+3}], v229 offset:{512*(7-i)}")
                out.append(f"ds_read_b64 v[{A+4*i}:{A+4*i+1}], v228 offset:{512*i}")
                out.append(f"ds_read_b64 v[{A+4*i+2}:{A+4*i+3}], v228 offset:{512*i+8}")
            return out

        def mfmas(s):
            A, B = SET[s]
            return [f"v_mfma_f32_16x16x32_bf16 v[{ACC+4*(x+y)}:{ACC+4*(x+y)+3}], v[{A+4*x}:{A+4*x+3}], v[{B+4*y}:{B+4*y+3}], v[{ACC+4*(x+y)}:{ACC+4*(x+y)+3}]"
                    for x in range(8) for y in range(7 - x, -1, -1)]

        rd = reads(0)
        for r in rd[:12]:
            a(r)
        a("s_waitcnt lgkmcnt(3)")
        for r in rd[12:]:
            a(r)
        a("v_add_u32 v228, 64, v228\nv_subrev_u32 v229, 64, v229\ns_mov_b32 s84, 0\ns_waitcnt lgkmcnt(0)")
        for b in range(8):
            a(f"v_mfma_f32_16x16x32_bf16 v[{ACC+4*b}:{ACC+4*b+3}], v[224:227], v[{96+4*b}:{99+4*b}], 0")
        LP = self.lab("conv_loop")
        body = Asm()
        for s in range(2):
            rd, mf = reads(1 - s), mfmas(s)
            for i, m in enumerate(mf):
                body(m)
                if i < 24:
                    body(rd[i])
                if i == 26:
                    body("v_add_u32 v228, 64, v228")
                if i == 27:
                    body("v_subrev_u32 v229, 64, v229")
                if s == 1 and i == 28:
                    body("s_add_u32 s84, s84, 1")
                if s == 1 and i == 29:
                    body("s_cmp_lt_u32 s84, 4")
            body("s_waitcnt lgkmcnt(0)")
        assert hazard.check_loop(body.lines) == 0
        a(f"{LP}:")
        a.lines += body.lines
        a(f"s_cbranch_scc1 {LP}")
        self.stamp(7)
        a(f"""
        v_lshrrev_b32 v6, 4, v{vLANE}
        v_and_b32 v4, 1, v6
        v_lshlrev_b32 v4, 9, v4
        v_lshrrev_b32 v6, 1, v6
        v_lshl_add_u32 v4, v6, 8, v4
        v_and_b32 v6, 15, v{vLANE}
        v_lshl_add_u32 v4, v6, 4, v4
        s_mul_i32 s84, s{sWAVE}, {HC_S + 64}
        v_add_u32 v4, s84, v4
        """)
        for n in range(8):
            a(f"v_cvt_pk_bf16_f32 v{64+2*n}, v{ACC+4*n}, v{ACC+4*n+1}\nv_cvt_pk_bf16_f32 v{65+2*n}, v{ACC+4*n+2}, v{ACC+4*n+3}")
        for m in range(4):
            a(f"v_permlane16_swap_b32 v{64+4*m}, v{66+4*m}\nv_permlane16_swap_b32 v{65+4*m}, v{67+4*m}")
        for m in range(4):
            a(f"ds_write_b128 v4, v[{64+4*m}:{67+4*m}] offset:{HC0 + 1024*m}")
        a(f"s_branch {M4}_b\n{M4}:")
        self.skip_mask()
        a(f"v_mov_b32 v4, {SKIP}\nds_write_b32 v4, v6\n{M4}_b:\nv_mov_b32 v8, {SKIP}\ns_waitcnt lgkmcnt(0)\ns_barrier\nds_read_b32 v9, v8")
        E4 = self.lab("conv_e4")
        a(f"""
        s_cmp_eq_u32 s{sWAVE}, 4
        s_cbranch_scc1 {E4}
        v_and_b32 v8, 3, v0
        v_lshrrev_b32 v6, 2, v0
        v_mul_u32_u24 v4, {HC_S + 64}, v8
        v_lshrrev_b32 v42, 5, v6
        v_lshl_add_u32 v4, v42, 9, v4
        v_and_b32 v42, 1, v6
        v_lshl_add_u32 v4, v42, 8, v4
        v_bfe_u32 v43, v6, 1, 4
        v_lshl_add_u32 v4, v43, 4, v4
        """)
        for k in range(4):
            a(f"ds_read_b128 v[{64+4*k}:{67+4*k}], v4 offset:{HC0 + 1024*k}")
        a(f"""
        v_mul_u32_u24 v4, 10240, v6
        v_lshl_add_u32 v4, v8, 4, v4
        v_lshrrev_b32 v6, 1, v6
        v_mul_u32_u24 v6, 10240, v6
        v_lshl_add_u32 v6, v42, 5, v6
        v_lshl_add_u32 v6, v8, 3, v6
        s_lshr_b32 s84, s{sIDX}, 1
        s_lshl_b32 s84, s84, 6
        s_and_b32 s85, s{sIDX}, 1
        s_mul_i32 s85, s85, 5120
        s_add_u32 s84, s84, s85
        s_add_u32 s84, s84, {YMAIN}
        s_lshl_b32 s85, s{sIDX}, 6
        s_add_u32 s85, s85, {YEXT}
        """)
        for k in range(4):
            a(f"v_mov_b32 v{81+2*k}, s{sT}")
        for k in range(4):
            a(f"""
            s_waitcnt lgkmcnt({3-k})
            v_mov_b32 v{80+2*k}, v{67+4*k}
            v_mov_b32 v{67+4*k}, s{sT}
            buffer_store_dwordx4 v[{64+4*k}:{67+4*k}], v4, s[{sWS}:{sWS+3}], s84 offen {self.pub}
            buffer_store_dwordx2 v[{80+2*k}:{81+2*k}], v6, s[{sWS}:{sWS+3}], s85 offen {self.pub}
            """)
            if k < 3:
                a("s_add_u32 s84, s84, 655360\ns_add_u32 s85, s85, 327680")
        a(f"{E4}:\ns_waitcnt lgkmcnt(0)\nv_readfirstlane_b32 s{sSKIP}, v9")
        self.stamp(8)

    def rank16(self, v, cnt, tmp):
        a = self.a
        a(f"v_mov_b32 v{cnt}, 0")
        for k in range(1, 16):
            a(f"v_sub_co_u32_dpp v{tmp}, vcc, v{v}, v{v} row_ror:{k} row_mask:0xf bank_mask:0xf\nv_addc_co_u32 v{cnt}, vcc, 0, v{cnt}, vcc")

    def select_init(self):
        self.a(f"""
        v_lshlrev_b32 v4, 2, v{vLANE}
        v_min_u32 v4, {SEL_N - SEL_C}, v4
        v_mov_b32 v6, 0
        ds_write_b32 v4, v6 offset:{SEL_C}
        """)

    def select(self):
        a = self.a
        KY = [44 + 2 * i for i in range(8)]
        W4, RK, MORE, NOMORE, DONE, W4B = (self.lab(x) for x in ("sel_w4", "sel_rank", "sel_more", "sel_nomore", "sel_done", "sel_w4b"))
        a(f"""
        v_mov_b32 v61, 0
        s_cmp_eq_u32 s{sWAVE}, 4
        s_cbranch_scc1 {W4}
        v_lshlrev_b32 v4, 4, v0
        s_mov_b32 s84, {RBOX}
        s_mov_b32 s85, {RBOX + 4096}
        s_mov_b32 s86, {RBOX + 8192}
        s_mov_b32 s89, {RBOX + 12288}
        """)
        so = ["s84", "s85", "s86", "s89"]
        self.poll([f"buffer_load_dwordx4 v[{44+4*k}:{47+4*k}], v4, s[{sWS}:{sWS+3}], {so[k]} offen {self.get}" for k in range(4)],
                  [45 + 2 * i for i in range(8)], 42)
        self.stamp(6)
        a(f"""
        v_max3_u32 v61, v{KY[0]}, v{KY[1]}, v{KY[2]}
        v_max3_u32 v62, v{KY[3]}, v{KY[4]}, v{KY[5]}
        v_max3_u32 v61, v61, v{KY[6]}, v{KY[7]}
        v_lshrrev_b32 v4, 4, v0
        v_max_u32 v61, v61, v62
        v_lshlrev_b32 v4, 2, v4
        v_max_u32_dpp v62, v61, v61 row_ror:8 row_mask:0xf bank_mask:0xf
        v_max_u32_dpp v62, v62, v62 row_ror:4 row_mask:0xf bank_mask:0xf
        v_max_u32_dpp v62, v62, v62 row_ror:2 row_mask:0xf bank_mask:0xf
        v_max_u32_dpp v62, v62, v62 row_ror:1 row_mask:0xf bank_mask:0xf
        s_mov_b32 s84, 0x00010001
        s_mov_b32 exec_lo, s84
        s_mov_b32 exec_hi, s84
        ds_write_b32 v4, v62 offset:{SEL_G}
        s_mov_b64 exec, -1
        {W4}:
        v_and_b32 v8, 15, v{vLANE}
        v_lshlrev_b32 v8, 2, v8
        s_waitcnt lgkmcnt(0)
        s_barrier
        ds_read_b32 v60, v8 offset:{SEL_G}
        v_mov_b32 v6, {SEL_N}
        v_mov_b32 v43, 1
        s_waitcnt lgkmcnt(0)
        {RK}:
        s_cmp_eq_u32 s{sWAVE}, 4
        s_cbranch_scc1 {NOMORE}
        """)
        self.rank16(60, 62, 63)
        a(f"""
        v_cmp_eq_u32 vcc, 8, v62
        v_mov_b32 v63, v61
        s_ff1_i32_b64 s84, vcc
        v_readlane_b32 s85, v60, s84
        {MORE}:
        v_cmp_le_u32 vcc, s85, v63
        s_and_b64 exec, vcc, vcc
        s_cbranch_execz {NOMORE}
        ds_add_rtn_u32 v62, v6, v43
        """)
        for i in range(8):
            a(f"v_cmp_lt_u32 vcc, v{KY[i]}, v63\nv_cndmask_b32 v{45+2*i}, 0, v{KY[i]}, vcc")
        a(f"""
        s_waitcnt lgkmcnt(0)
        v_min_u32 v62, 16, v62
        v_lshlrev_b32 v62, 2, v62
        ds_write_b32 v62, v63 offset:{SEL_C}
        v_max3_u32 v63, v45, v47, v49
        v_max3_u32 v63, v63, v51, v53
        v_max3_u32 v63, v63, v55, v57
        v_max_u32 v63, v63, v59
        s_branch {MORE}
        {NOMORE}:
        s_mov_b64 exec, -1
        s_waitcnt lgkmcnt(0)
        s_barrier
        ds_read_b32 v62, v6
        ds_read_b32 v60, v8 offset:{SEL_C}
        s_waitcnt lgkmcnt(0)
        v_readfirstlane_b32 s84, v62
        s_cmp_le_u32 s84, 16
        s_cbranch_scc1 {DONE}
        s_barrier
        """)
        self.select_init()
        a(f"""
        v_mov_b32 v6, {SEL_N}
        s_waitcnt lgkmcnt(0)
        s_barrier
        s_branch {RK}
        {DONE}:
        """)

    def silu(self, x, t):
        self.a(f"""
        v_mul_f32 v{t}, s84, v{x}
        v_exp_f32 v{t}, v{t}
        v_add_f32 v{t}, 1.0, v{t}
        v_rcp_f32 v{t}, v{t}
        v_mul_f32 v{x}, v{x}, v{t}
        """)

    def rnd(self, regs, t):
        for i in range(0, len(regs), 2):
            self.a(f"v_cvt_pk_bf16_f32 v{t}, v{regs[i]}, v{regs[i+1]}\nv_lshlrev_b32 v{regs[i]}, 16, v{t}\nv_and_b32 v{regs[i+1]}, s86, v{t}")

    def ffn1(self):
        a = self.a
        FR, CS, AC, QF = 128, 192, 208, 64
        self.ffn1_loads()
        self.select_init()
        a(f"""
        v_lshrrev_b32 v4, 2, v0
        v_bfe_u32 v6, v0, 5, 1
        v_lshlrev_b32 v6, 1, v6
        v_and_b32 v8, 3, v0
        v_xor_b32 v6, v6, v8
        v_lshlrev_b32 v4, 6, v4
        v_lshl_add_u32 v4, v6, 4, v4
        v_add_u32 v6, 40960, v4
        s_waitcnt vmcnt(0)
        """)
        for i in range(8):
            a(f"ds_write_b128 v4, v[{vR+4*i}:{vR+4*i+3}] offset:{BIG + 5120*i}\nds_write_b128 v6, v[{vR+32+4*i}:{vR+32+4*i+3}] offset:{BIG + 5120*i}")
        a(f"""
        v_lshrrev_b32 v6, 4, v{vLANE}
        v_bfe_u32 v4, v{vLANE}, 2, 2
        v_lshl_add_u32 v4, v6, 3, v4
        v_lshlrev_b32 v4, 6, v4
        v_and_b32 v8, 3, v{vLANE}
        v_lshl_add_u32 v4, v8, 3, v4
        v_and_b32 v6, 1, v6
        v_lshl_add_u32 v4, v6, 5, v4
        s_lshl_b32 s84, s{sWAVE}, 13
        v_add_u32 v4, s84, v4
        v_xor_b32 v6, 32, v4
        v_mov_b32 v44, 0x3f803f80
        v_mov_b32 v45, 0x3f803f80
        v_mov_b32 v46, 0x3f803f80
        v_mov_b32 v47, 0x3f803f80
        s_waitcnt lgkmcnt(0)
        s_barrier
        """)
        fr = lambda s, m, t: FR + 16 * s + 8 * m + 4 * t
        for s in range(4):
            for m in range(2):
                for t in range(2):
                    for hh in range(2):
                        a(f"ds_read_b64_tr_b16 v[{fr(s,m,t)+2*hh}:{fr(s,m,t)+2*hh+1}], v{(4,6)[t]} offset:{BIG + 40960*m + 2048*s + 256*hh}")
            a("s_waitcnt lgkmcnt(0)")
            for m in range(2):
                for t in range(2):
                    c = CS + 8 * m + 4 * t
                    a(f"v_mfma_f32_16x16x32_bf16 v[{c}:{c+3}], v[{fr(s,m,t)}:{fr(s,m,t)+3}], v[44:47], " + ("0" if s == 0 else f"v[{c}:{c+3}]"))
        self.stamp(5)
        self.select()
        self.stamp(7)
        a(f"""
        v_and_b32 v4, 2047, v60
        v_sub_u32 v61, 2047, v4
        v_mul_u32_u24 v4, 1280, v61
        v_lshrrev_b32 v6, 4, v{vLANE}
        v_lshl_add_u32 v4, v6, 4, v4
        s_lshl_b32 s84, s{sWAVE}, 8
        """)
        for s in range(4):
            a(f"buffer_load_dwordx4 v[{QF+4*s}:{QF+4*s+3}], v4, s[{sQ}:{sQ+3}], s84 offen offset:{64*s}")
        a(f"v_lshlrev_b32 v42, 4, v61\ns_mov_b32 s89, {STBOX}")
        a(f"buffer_load_dwordx4 v[80:83], v42, s[{sWS}:{sWS+3}], s89 offen {self.get}")
        self.rank16(60, 62, 63)
        NI = self.lab("noidx")
        a(f"""
        v_sub_u32 v62, 15, v62
        s_lshl_b32 s84, s{sIDX}, 3
        s_or_b32 s84, s84, s{sWAVE}
        s_cmp_lg_u32 s84, 0
        s_cbranch_scc1 {NI}
        v_lshlrev_b32 v43, 3, v62
        v_mov_b32 v44, v61
        v_mov_b32 v45, s{sT}
        v_cmp_gt_u32 vcc, 8, v62
        s_mov_b32 s85, {IDXBOX}
        s_and_b64 exec, vcc, 0xffff
        buffer_store_dwordx2 v[44:45], v43, s[{sWS}:{sWS+3}], s85 offen {self.pub}
        s_mov_b64 exec, 1
        v_mov_b32 v43, {EPOCH}
        buffer_store_dword v45, v43, s[{sWS}:{sWS+3}], 0 offen sc1
        s_mov_b64 exec, -1
        s_waitcnt vmcnt(2)
        s_branch {NI}_b
        {NI}:
        s_waitcnt vmcnt(0)
        {NI}_b:
        v_lshlrev_b32 v62, 4, v62
        v_and_b32 v84, 15, v{vLANE}
        """)
        if self.fused:
            OK = self.lab("st_ok")
            a(f"v_cmp_ne_u32 vcc, s{sT}, v83\ns_cbranch_vccz {OK}")
            self.poll([f"buffer_load_dwordx4 v[80:83], v42, s[{sWS}:{sWS+3}], s89 offen {self.get}"], [83], 44)
            a(f"{OK}:")
        for s in range(4):
            for m in range(2):
                for t in range(2):
                    c = AC + 8 * m + 4 * t
                    a(f"v_mfma_f32_16x16x32_bf16 v[{c}:{c+3}], v[{fr(s,m,t)}:{fr(s,m,t)+3}], v[{QF+4*s}:{QF+4*s+3}], " + ("0" if s == 0 else f"v[{c}:{c+3}]"))
        a(f"""
        v_mov_b32 v85, v81
        v_mov_b32 v86, v61
        v_mov_b32 v87, 0
        ds_write_b128 v62, v[84:87] offset:{SEL_T}
        s_lshl_b32 s84, s{sWAVE}, 12
        v_lshlrev_b32 v4, 4, v{vLANE}
        v_add_u32 v4, s84, v4
        """)
        for i in range(16):
            a(f"v_fma_f32 v{AC+i}, -v80, v{CS+i}, v{AC+i}")
        for q in range(4):
            a(f"ds_write_b128 v4, v[{AC+4*q}:{AC+4*q+3}] offset:{BIG + 1024*q}")
        FIN = self.lab("ffn1_done")
        a(f"""
        v_and_b32 v4, 15, v{vLANE}
        v_lshlrev_b32 v4, 4, v4
        s_waitcnt lgkmcnt(0)
        s_barrier
        s_cmp_ge_u32 s{sWAVE}, 2
        s_cbranch_scc1 {FIN}
        ds_read_b128 v[84:87], v4 offset:{SEL_T}
        v_and_b32 v6, 48, v{vLANE}
        s_lshl_b32 s84, s{sWAVE}, 10
        s_mov_b32 s86, 0xffff0000
        s_waitcnt lgkmcnt(0)
        v_and_b32 v84, 15, v84
        v_add_u32 v6, v6, v84
        v_lshl_add_u32 v6, v6, 4, s84
        """)
        for wv in range(5):
            a(f"ds_read_b128 v[{128+8*wv}:{131+8*wv}], v6 offset:{BIG + 4096*wv}\nds_read_b128 v[{132+8*wv}:{135+8*wv}], v6 offset:{BIG + 4096*wv+2048}")
        a(f"""
        s_lshl_b32 s85, s{sIDX}, 1
        s_add_u32 s85, s85, s{sWAVE}
        s_lshl_b32 s85, s85, 9
        s_add_u32 s85, s85, {HBOX}
        v_lshrrev_b32 v6, 4, v{vLANE}
        v_lshl_add_u32 v4, v6, 7, v4
        v_mov_b32 v46, s{sT}
        v_mov_b32 v47, s{sT}
        s_mov_b32 s84, 0xbfb8aa3b
        s_waitcnt lgkmcnt(0)
        """)
        pr = lambda b: f"v[{b}:{b+1}]"
        for i in range(0, 8, 2):
            a(f"v_pk_add_f32 {pr(128+i)}, {pr(128+i)}, {pr(136+i)}\nv_pk_add_f32 {pr(144+i)}, {pr(144+i)}, {pr(152+i)}")
        for i in range(0, 8, 2):
            a(f"v_pk_add_f32 {pr(128+i)}, {pr(128+i)}, {pr(160+i)}")
        for i in range(0, 8, 2):
            a(f"v_pk_add_f32 {pr(128+i)}, {pr(128+i)}, {pr(144+i)}")
        for i in range(8):
            a(f"v_mul_f32 v{128+i}, v{128+i}, v85")
        self.rnd(list(range(128, 136)), 42)
        for i in range(4):
            self.silu(128 + i, 136 + i)
        self.rnd(list(range(128, 132)), 42)
        for i in range(4):
            a(f"v_mul_f32 v{128+i}, v{128+i}, v{132+i}")
        a(f"""
        v_cvt_pk_bf16_f32 v44, v128, v129
        v_cvt_pk_bf16_f32 v45, v130, v131
        s_mov_b32 s82, 0x00ff00ff
        s_mov_b32 exec_lo, s82
        s_mov_b32 exec_hi, s82
        buffer_store_dwordx4 v[44:47], v4, s[{sWS}:{sWS+3}], s85 offen {self.pub}
        """)
        a(f"s_mov_b64 exec, -1\n{FIN}:")
        self.stamp(8)

    def ffn2(self, p3):
        a = self.a
        FR, HB = 128, 64
        self.ffn2_loads()
        self.p3_pre()
        self.select_init()
        a(f"v_lshlrev_b32 v4, 4, v0\ns_waitcnt vmcnt(0)")
        for i in range(10):
            a(f"ds_write_b128 v4, v[{vR+4*i}:{vR+4*i+3}] offset:{BIG + 5120*i}")
        a(f"""
        s_min_u32 s84, s{sWAVE}, 3
        s_mul_i32 s84, s84, 12288
        v_lshlrev_b32 v4, 3, v{vLANE}
        v_add_u32 v4, s84, v4
        s_waitcnt lgkmcnt(0)
        s_barrier
        """)
        for n in range(24):
            a(f"ds_read_b64_tr_b16 v[{FR+2*n}:{FR+2*n+1}], v4 offset:{BIG + 512*n}")
            if n % 12 == 11:
                a("s_waitcnt lgkmcnt(0)")
        self.stamp(5)
        self.select()
        self.rank16(60, 62, 63)
        a(f"""
        v_sub_u32 v62, 15, v62
        v_lshlrev_b32 v62, 4, v62
        ds_write_b32 v62, v60 offset:{SEL_T}
        v_and_b32 v4, 7, v{vLANE}
        v_lshlrev_b32 v4, 4, v4
        s_waitcnt lgkmcnt(0)
        ds_read_b32 v60, v4 offset:{SEL_T}
        s_waitcnt lgkmcnt(0)
        """)
        self.stamp(7)
        W4, NOTW, FIN = self.lab("ffn2_w4"), self.lab("ffn2_notw"), self.lab("ffn2_done")
        a(f"""
        s_cmp_lg_u32 s{sWAVE}, 4
        s_cbranch_scc1 {W4}
        v_and_b32 v4, 2047, v60
        v_sub_u32 v61, 2047, v4
        v_lshrrev_b32 v6, 4, v{vLANE}
        v_mul_u32_u24 v62, 1280, v61
        v_lshl_add_u32 v62, v6, 3, v62
        s_lshl_b32 s84, s{sIDX}, 5
        v_add_u32 v62, s84, v62
        buffer_load_dwordx2 v[120:121], v62, s[{sQ}:{sQ+3}], 0 offen
        v_lshlrev_b32 v42, 4, v61
        s_mov_b32 s89, {STBOX}
        """)
        self.poll([f"buffer_load_dwordx4 v[80:83], v42, s[{sWS}:{sWS+3}], s89 offen {self.get}"], [83], 44)
        a(f"""
        v_lshlrev_b32 v4, 9, v{vLANE}
        v_add_u32 v8, 32768, v4
        v_min_u32 v8, {95 * 512}, v8
        s_mov_b32 s84, {HBOX}
        """)
        self.poll([f"buffer_load_dword v46, v4, s[{sWS}:{sWS+3}], s84 offen offset:8 sc1",
                   f"buffer_load_dword v47, v8, s[{sWS}:{sWS+3}], s84 offen offset:8 sc1"], [46, 47], 44, self.nap)
        a(f"""
        {W4}:
        s_barrier
        s_cmp_eq_u32 s{sWAVE}, 4
        s_cbranch_scc1 {NOTW}
        v_lshrrev_b32 v6, 4, v{vLANE}
        v_lshl_add_u32 v4, v6, 7, v4
        v_bfe_u32 v6, v{vLANE}, 3, 1
        v_lshl_add_u32 v4, v6, 9, v4
        s_mul_i32 s84, s{sWAVE}, 12288
        s_add_u32 s84, s84, {HBOX}
        s_add_u32 s85, s84, 4096
        s_add_u32 s86, s84, 8192
        """)
        self.stamp(13)
        self.poll([f"buffer_load_dwordx3 v[{HB+4*m}:{HB+4*m+2}], v4, s[{sWS}:{sWS+3}], s{84 + m // 4} offen offset:{1024*(m%4)} {self.get}" for m in range(12)],
                  [HB + 4 * m + 2 for m in range(12)], 42)
        for m in range(12):
            for hi in range(2):
                c = 112 + 4 * hi
                n = 2 * m + hi
                a(f"v_mfma_f32_16x16x16_bf16 v[{c}:{c+3}], v[{FR+2*n}:{FR+2*n+1}], v[{HB+4*m}:{HB+4*m+1}], " + ("0" if m == 0 else f"v[{c}:{c+3}]"))
        a(f"s_lshl_b32 s84, s{sWAVE}, 10\nv_lshlrev_b32 v4, 4, v{vLANE}\nv_add_u32 v4, s84, v4")
        for i in range(4):
            a(f"v_add_f32_dpp v{112+i}, v{116+i}, v{112+i} row_ror:8 row_mask:0xf bank_mask:0xf")
        a(f"""
        ds_write_b128 v4, v[112:115] offset:{BIG}
        {NOTW}:
        s_waitcnt lgkmcnt(0)
        s_barrier
        s_cmp_lg_u32 s{sWAVE}, 4
        s_cbranch_scc1 {FIN}
        v_lshlrev_b32 v4, 4, v{vLANE}
        """)
        for wv in range(4):
            a(f"ds_read_b128 v[{128+4*wv}:{131+4*wv}], v4 offset:{BIG + 1024*wv}")
        a(f"""
        s_mov_b32 s86, 0xffff0000
        s_mov_b32 s84, 0xbfb8aa3b
        v_mul_f32 v42, s84, v82
        v_exp_f32 v42, v42
        v_lshlrev_b32 v116, 16, v120
        v_and_b32 v117, s86, v120
        v_add_f32 v42, 1.0, v42
        v_rcp_f32 v42, v42
        v_lshlrev_b32 v118, 16, v121
        v_and_b32 v119, s86, v121
        v_cvt_pk_bf16_f32 v42, v42, v42
        v_and_b32 v82, s86, v42
        """)
        for i in range(4):
            a(f"v_sub_f32 v{112+i}, v{116+i}, v80")
        self.rnd([112, 113, 114, 115], 42)
        for i in range(4):
            a(f"v_mul_f32 v{112+i}, v{112+i}, v81")
        self.rnd([112, 113, 114, 115], 42)
        a("s_waitcnt lgkmcnt(0)")
        for i in range(4):
            a(f"v_add_f32 v{128+i}, v{128+i}, v{132+i}\nv_add_f32 v{136+i}, v{136+i}, v{140+i}")
        for i in range(4):
            a(f"v_add_f32 v{128+i}, v{128+i}, v{136+i}")
        self.rnd([128, 129, 130, 131], 42)
        for i in range(4):
            a(f"v_mul_f32 v{128+i}, v{128+i}, v82")
        self.rnd([128, 129, 130, 131], 42)
        for i in range(4):
            a(f"v_add_f32 v{128+i}, v{128+i}, v{112+i}")
        self.rnd([128, 129, 130, 131], 42)
        for i in range(4):
            self.silu(128 + i, 132 + i)
        self.rnd([128, 129, 130, 131], 42)
        a(f"""
        v_lshrrev_b32 v4, 3, v61
        v_mul_u32_u24 v43, 10240, v4
        v_lshl_add_u32 v43, v6, 5, v43
        s_lshl_b32 s84, s{sIDX}, 7
        s_add_u32 s84, s84, {YMAIN}
        s_add_u32 s85, s84, 5120
        v_and_b32 v8, 1, v4
        v_lshrrev_b32 v4, 1, v4
        v_mul_u32_u24 v4, 10240, v4
        v_lshl_add_u32 v4, v8, 5, v4
        v_lshrrev_b32 v8, 1, v6
        v_lshl_add_u32 v4, v8, 7, v4
        v_and_b32 v8, 1, v6
        v_lshl_add_u32 v4, v8, 4, v4
        s_lshl_b32 s89, s{sIDX}, 8
        s_add_u32 s89, s89, {YEXT}
        """)
        a(f"v_add_u32 v122, s84, v43\nv_add_u32 v123, s89, v4\nv_mov_b32 v124, v61\nv_mov_b32 v125, v62\n{FIN}:")
        self.stamp(8)

    def routed_loads(self):
        out = []
        for i in range(4):
            out.append(f"buffer_load_dwordx4 v[{136+4*i}:{139+4*i}], v122, s[{sWS}:{sWS+3}], {('0', 's91')[i & 1]} offen offset:{16*(i>>1)} {self.get}")
            out.append(f"buffer_load_dwordx2 v[{152+2*i}:{153+2*i}], v123, s[{sWS}:{sWS+3}], 0 offen offset:{64*(i&1) + 8*(i>>1)} {self.get}")
        return out

    def routed_finish(self):
        a = self.a
        OK = self.lab("routed_ok")
        tags = [139 + 4 * i for i in range(4)] + [153 + 2 * i for i in range(4)]
        a(f"v_xor_b32 v42, s{sT}, v{tags[0]}")
        for t in tags[1:]:
            a(f"v_xor_b32 v43, s{sT}, v{t}\nv_or_b32 v42, v42, v43")
        a(f"v_cmp_ne_u32 vcc, 0, v42\ns_cbranch_vccz {OK}")
        self.poll(self.routed_loads(), tags, 42)
        a(f"""
        {OK}:
        v_bfe_u32 v4, v124, 1, 2
        v_cmp_eq_u32 s[82:83], 1, v4
        v_cmp_eq_u32 s[84:85], 2, v4
        v_cmp_eq_u32 s[88:89], 3, v4
        v_and_b32 v4, 1, v124
        v_lshlrev_b32 v4, 4, v4
        v_sub_u32 v4, 16, v4
        """)
        for i in range(4):
            y = 136 + 4 * i
            a(f"""
            v_cndmask_b32 v{y}, v{y}, v{y+1}, s[82:83]
            v_cndmask_b32 v{y}, v{y}, v{y+2}, s[84:85]
            v_cndmask_b32 v{y}, v{y}, v{152+2*i}, s[88:89]
            v_lshlrev_b32 v{y}, v4, v{y}
            v_and_b32 v{y}, s86, v{y}
            v_mul_f32 v{112+i}, v{112+i}, v{y}
            """)
        self.rnd([112, 113, 114, 115], 42)
        for i in range(4):
            a(f"v_mul_f32 v{112+i}, v{112+i}, v{128+i}")
        self.rnd([112, 113, 114, 115], 42)
        for i in range(4):
            a(f"v_add_f32 v{112+i}, v{112+i}, v{116+i}")
        a(f"""
        v_cvt_pk_bf16_f32 v112, v112, v113
        v_cvt_pk_bf16_f32 v113, v114, v115
        s_mov_b32 s82, 0x00ff00ff
        s_mov_b32 exec_lo, s82
        s_mov_b32 exec_hi, s82
        buffer_store_dwordx2 v[112:113], v125, s[{sOUT}:{sOUT+3}], 0 offen nt
        s_mov_b64 exec, -1
        """)

    def skip_mask(self):
        a = self.a
        a(f"v_and_b32 v4, 7, v{vLANE}\nv_lshlrev_b32 v4, 3, v4\ns_mov_b32 s84, {IDXBOX}")
        self.poll([f"buffer_load_dwordx2 v[44:45], v4, s[{sWS}:{sWS+3}], s84 offen {self.get}"], [45], 42, 4)
        a(f"""
        v_lshrrev_b32 v4, 3, v44
        v_and_b32 v6, 7, v44
        v_lshlrev_b32 v6, v6, 1
        v_cmp_eq_u32 vcc, s{sW}, v4
        v_cndmask_b32 v6, 0, v6, vcc
        v_or_b32_dpp v6, v6, v6 row_half_mirror row_mask:0xf bank_mask:0xf
        v_or_b32_dpp v6, v6, v6 quad_perm:[1,0,3,2] row_mask:0xf bank_mask:0xf
        v_or_b32_dpp v6, v6, v6 quad_perm:[2,3,0,1] row_mask:0xf bank_mask:0xf
        """)

    def p3(self):
        a = self.a
        srd(a, sOUT, 26, 2621440)
        NR, NR2, NC, CAN = self.lab("p3_nr"), self.lab("p3_nr2"), self.lab("p3_nc"), self.lab("p3_can")
        a(f"""
        s_lshl_b32 s92, s{sCLS}, 4
        s_add_u32 s92, s92, s{sWAVE}
        s_cmp_eq_u32 s92, 0x14
        s_cbranch_scc1 {CAN}
        s_cmp_eq_u32 s{sCLS}, 1
        s_cbranch_scc1 {NC}
        """)
        self.skip_mask()
        a(f"""
        v_readfirstlane_b32 s{sSKIP}, v6
        {CAN}:
        v_and_b32 v4, 7, v{vLANE}
        v_mul_u32_u24 v4, 640, v4
        s_mul_i32 s84, s{sW}, 10240
        s_add_u32 s84, s84, {YMAIN + 5120 + 9 * 64}
        """)
        self.poll([f"buffer_load_dword v44, v4, s[{sWS}:{sWS+3}], s84 offen offset:12 sc1"], [44], 42, self.nap)
        a(f"""
        {NC}:
        v_lshlrev_b32 v4, 4, v0
        v_lshrrev_b32 v6, 2, v0
        v_lshlrev_b32 v6, 7, v6
        v_and_b32 v8, 3, v0
        v_lshl_add_u32 v6, v8, 3, v6
        s_mul_i32 s87, s{sW}, 10240
        s_add_u32 s88, s87, 5120
        s_add_u32 s84, s87, {YMAIN}
        s_add_u32 s85, s88, {YMAIN}
        s_lshr_b32 s89, s{sW}, 1
        s_mul_i32 s89, s89, 10240
        s_and_b32 s86, s{sW}, 1
        s_lshl_b32 s86, s86, 5
        s_add_u32 s89, s89, s86
        s_add_u32 s89, s89, {YEXT}
        s_mov_b32 s86, 0xffff0000
        s_movk_i32 s91, 5120
        s_cmp_lg_u32 s92, 0x34
        s_cbranch_scc1 {NR}
        """)
        for ld in self.routed_loads():
            a(ld)
        a(f"{NR}:")
        self.stamp(9)
        self.poll([f"buffer_load_dwordx4 v[44:47], v4, s[{sWS}:{sWS+3}], s84 offen {self.get}",
                   f"buffer_load_dwordx4 v[48:51], v4, s[{sWS}:{sWS+3}], s85 offen {self.get}",
                   f"buffer_load_dwordx2 v[52:53], v6, s[{sWS}:{sWS+3}], s89 offen {self.get}",
                   f"buffer_load_dwordx2 v[54:55], v6, s[{sWS}:{sWS+3}], s89 offen offset:64 {self.get}"],
                  [47, 51, 53, 55], 42)
        self.stamp(10)
        pr = lambda b: f"v[{b}:{b+1}]"
        for r in range(8):
            d = r // 2
            ya, yb = (44 + d, 48 + d) if d < 3 else (52, 54)
            t = 56 + 2 * r
            if r % 2 == 0:
                a(f"v_lshlrev_b32 v{t}, 16, v{ya}\nv_lshlrev_b32 v{t+1}, 16, v{yb}")
            else:
                a(f"v_and_b32 v{t}, s86, v{ya}\nv_and_b32 v{t+1}, s86, v{yb}")
            L = self.lab("skip")
            a(f"""
            v_pk_fma_f32 {pr(t)}, {pr(t)}, {pr(vC+2*r)}, {pr(vX+2*r)}
            s_bitcmp1_b32 s{sSKIP}, {r}
            v_cvt_pk_bf16_f32 v{t}, v{t}, v{t+1}
            s_cbranch_scc1 {L}
            buffer_store_dword v{t}, v5, s[{sOUT}:{sOUT+3}], s{87 + r // 4} offen offset:{(r % 4) * 1280} nt
            {L}:
            """)
        a(f"s_cmp_lg_u32 s92, 0x34\ns_cbranch_scc1 {NR2}")
        self.routed_finish()
        a(f"{NR2}:")
        self.stamp(11)

    def finish(self, end, code_end):
        if self.stamps:
            self.a("s_memtime s[96:97]\ns_waitcnt lgkmcnt(0)\ns_sub_u32 s96, s96, s100\nv_writelane_b32 v254, s96, 12")
        self.stamps_out()
        if self.hold:
            L = self.lab("hold")
            self.a(f"s_waitcnt vmcnt(0)\n{L}:\ns_memrealtime s[96:97]\ns_waitcnt lgkmcnt(0)\ns_sub_u32 s96, s96, s98\ns_sub_u32 s96, s96, s101\ns_cmp_lt_i32 s96, {self.hold}\ns_cbranch_scc1 {L}")
        self.a(f"{end}:\ns_endpgm\n{code_end}:")
        lines, _ = hazard.fix(self.a.lines)
        self.a = Asm()
        return "\n".join(lines) + "\n"

    def fused_kernel(self):
        a = self.a
        self.prologue("L_end", "L_code_end")
        self.load_q()
        self.load_kv()
        self.stats(20)
        self.kv()
        c2, c3, c0, p3 = "L_c2", "L_c3", "L_c0", "L_p3"
        a(f"s_cmp_lg_u32 s{sCLS}, 1\ns_cbranch_scc1 {c2}")
        self.conv(True)
        a(f"s_branch {p3}\n{c2}:\ns_cmp_lg_u32 s{sCLS}, 2\ns_cbranch_scc1 {c3}")
        self.ffn1()
        a(f"s_branch {c0}\n{c3}:\ns_cmp_lg_u32 s{sCLS}, 3\ns_cbranch_scc1 {c0}")
        self.ffn2(True)
        a(f"s_branch {p3}\n{c0}:")
        self.p3_pre()
        a(f"{p3}:")
        self.p3()
        return self.finish("L_end", "L_code_end")


TARGET = '.amdgcn_target "amdgcn-amd-amdhsa--gfx950"\n'


def emit_fused(**kw):
    g = Gen(True, **kw)
    return (f"; @launch grid=(256,1,1) block=(320,1,1) lds={LDS_BYTES}\n" + TARGET
            + kernel_block(KNAME + "_kernel", g.fused_kernel(), 256))


if __name__ == "__main__":
    open("fused.s", "w").write(emit_fused())
    open("fused_st.s", "w").write(emit_fused(stamps=True))
    open("fused_st_tnt.s", "w").write(emit_fused(stamps=True, touch="nt", wld="nt"))
    open("fused_st_tnt2.s", "w").write(emit_fused(stamps=True, touch="nt", wld=""))
    for nm, pr in {"q": (4, 0, 10240, ""), "qnt": (4, 0, 10240, "nt"), "wslo": (30, 16 << 20, 10240, ""), "wshi": (30, 250 << 20, 10240, ""),
                   "out": (26, 0, 10240, ""), "ws0": (30, 0, 10240, ""), "bx": (16, 0, 10240, ""), "wslo40": (30, 16 << 20, 40960, ""),
                   "wslo40nt": (30, 16 << 20, 40960, "nt"), "wshi40": (30, 240 << 20, 40960, ""), "wsmid40": (30, 128 << 20, 40960, "")}.items():
        open(f"fused_p_{nm}.s", "w").write(emit_fused(report=99, probe=pr))
    for i in (1, 3, 4, 6, 7, 8, 10):
        open(f"fused_r{i}.s", "w").write(emit_fused(report=i))
```

```python
from gen import Asm, kernel_block, KNAME
import hazard

KV = 0x000000
YMAIN = 0x400000
YEXT = 0x700000
RBOX = 0x880000
STBOX = 0x890000
HBOX = 0x8A0000
IDXBOX = 0x8B0000
EPOCH = 0x8B1000
STAMPS = 0x900000
WS_USED = 0xA00000

HC_K = 4160
HC_S = 4 * HC_K
STAT = 0
SEL_C = 128
SEL_T = 256
SKIP = 512
BIG = 1280
XB = BIG
XS = 4576
HC0 = 19712
LDS_BYTES = HC0 + 4 * HC_S + 1024

vLANE = 1
vX, vC = 10, 26
vQ, vK, vV, vSH = 232, 50, 61, 70
vR = 128
sQ, sKK, sVV, sOUT, sWS, sRA, sRB = 32, 36, 40, 44, 48, 52, 56
sW, sWAVE, sT, sIDX, sCLS, sSKIP = 60, 61, 62, 63, 64, 65
sST = 66
SPIN = 400000
ONES = "0x3f803f80"


def srd(a, s, lo, size):
    a(f"s_mov_b32 s{s}, s{lo}\ns_mov_b32 s{s+1}, s{lo+1}\ns_mov_b32 s{s+2}, {size}\ns_mov_b32 s{s+3}, 0x20000")


def pr(b):
    return f"v[{b}:{b+1}]"


def q4(b):
    return f"v[{b}:{b+3}]"


WS = f"s[{sWS}:{sWS+3}]"


class Gen:
    def __init__(self, stamps=False, ld="nt", hold=0, nap=1, report=None, stamp_wave=0, probe=None):
        self.probe = probe
        self.stamps, self.ld, self.nap, self.report, self.stamp_wave = stamps, ld, nap, report, stamp_wave
        self.hold = 3000 if report is not None else hold
        self.a = Asm()
        self.uid = 0

    def lab(self, base):
        self.uid += 1
        return f"L_{base}_{self.uid}"

    def stamp(self, i):
        if self.report == i:
            self.a("s_memrealtime s[96:97]\ns_waitcnt lgkmcnt(0)\ns_sub_u32 s96, s96, s98\ns_mul_i32 s101, s96, 20")
        if self.stamps:
            self.a(f"s_memrealtime s[96:97]\ns_waitcnt lgkmcnt(0)\nv_writelane_b32 v254, s96, {i}")

    def finish_wave(self):
        a = self.a
        if self.stamps:
            a(f"""
            s_memtime s[96:97]
            s_waitcnt lgkmcnt(0)
            s_sub_u32 s96, s96, s100
            v_writelane_b32 v254, s96, 12
            s_mul_i32 s96, s{sW}, 6
            s_add_u32 s96, s96, s{sWAVE}
            s_add_u32 s96, s96, 1
            s_lshl_b32 s96, s96, 8
            s_add_u32 s96, s96, {STAMPS}
            v_lshlrev_b32 v253, 2, v{vLANE}
            buffer_store_dword v254, v253, {WS}, s96 offen
            """)
        if self.probe == "skew":
            a("v_mov_b32 v9, 0\nglobal_load_dword v8, v9, s[28:29] sc1\ns_waitcnt vmcnt(0)\nv_readfirstlane_b32 s96, v8\ns_sub_u32 s96, s96, s98\ns_mul_i32 s101, s96, 20")
        if self.hold:
            L = self.lab("hold")
            a(f"s_waitcnt vmcnt(0)\n{L}:\ns_memrealtime s[96:97]\ns_waitcnt lgkmcnt(0)\ns_sub_u32 s96, s96, s98\ns_sub_u32 s96, s96, s101\ns_cmp_lt_i32 s96, {self.hold}\ns_cbranch_scc1 {L}")

    def poll(self, loads, tags, tmp, nap=0, first=True):
        a = self.a
        L, D, C = self.lab("poll"), self.lab("polled"), self.lab("chk")
        tags = list(tags)
        a(f"s_mov_b32 s95, 0\ns_mul_i32 s83, s{sT}, {len(tags)}")
        if not first:
            a(f"s_branch {C}")
        a(f"{L}:")
        for ld in loads:
            a(ld)
        a(f"{C}:\ns_waitcnt vmcnt(0)")
        if len(tags) == 1:
            acc = tags[0]
        else:
            acc = tmp
            rest = tags[:]
            if len(rest) % 2 == 0:
                a(f"v_add_u32 v{tmp}, v{rest[0]}, v{rest[1]}")
                rest = rest[2:]
            else:
                a(f"v_add3_u32 v{tmp}, v{rest[0]}, v{rest[1]}, v{rest[2]}")
                rest = rest[3:]
            for i in range(0, len(rest), 2):
                a(f"v_add3_u32 v{tmp}, v{tmp}, v{rest[i]}, v{rest[i+1]}")
        a(f"""
        v_cmp_ne_u32 vcc, s83, v{acc}
        s_add_u32 s95, s95, 1
        s_and_b64 exec, vcc, vcc
        s_cbranch_execz {D}
        {f"s_sleep {nap}" if nap else ""}
        s_cmp_lt_u32 s95, {SPIN}
        s_cbranch_scc1 {L}
        {D}:
        s_mov_b64 exec, -1
        """)

    def rank16(self, v, cnt, tmp):
        a = self.a
        a(f"v_mov_b32 v{cnt}, 0")
        for k in range(1, 16):
            a(f"v_sub_co_u32_dpp v{tmp}, vcc, v{v}, v{v} row_ror:{k} row_mask:0xf bank_mask:0xf\nv_addc_co_u32 v{cnt}, vcc, 0, v{cnt}, vcc")

    def silu(self, xs, ts):
        for op in ("v_mul_f32 v{t}, s84, v{x}", "v_exp_f32 v{t}, v{t}", "v_add_f32 v{t}, 1.0, v{t}", "v_rcp_f32 v{t}, v{t}", "v_mul_f32 v{x}, v{x}, v{t}"):
            for x, t in zip(xs, ts):
                self.a(op.format(x=x, t=t))

    def rnd(self, regs, t):
        n = len(regs) // 2
        for i in range(n):
            self.a(f"v_cvt_pk_bf16_f32 v{t+i}, v{regs[2*i]}, v{regs[2*i+1]}")
        for i in range(n):
            self.a(f"v_lshlrev_b32 v{regs[2*i]}, 16, v{t+i}\nv_and_b32 v{regs[2*i+1]}, s86, v{t+i}")

    def xlane_sum(self, v, t, op="v_add_f32"):
        for sw in ("v_permlane32_swap_b32", "v_permlane16_swap_b32"):
            self.a(f"v_mov_b32 v{t}, v{v}\n{sw} v{v}, v{t}\n{op} v{v}, v{v}, v{t}")

    def make_tag(self):
        self.a(f"v_readfirstlane_b32 s85, v7\ns_mul_i32 s85, s85, 0x41c64e6d\ns_add_u32 s{sT}, s85, 0x3039")

    def prologue(self):
        a = self.a
        a(f"""
        s_cmp_ge_u32 s2, 256
        s_cbranch_scc1 L_end
        {"s_memrealtime s[98:99]" if self.hold else ""}
        {"s_mov_b32 s101, 0" if self.hold else ""}
        {"s_memtime s[100:101]" if self.stamps else ""}
        s_load_dwordx16 s[4:19], s[0:1], 0
        s_load_dwordx8 s[20:27], s[0:1], 64
        s_load_dwordx4 s[28:31], s[0:1], 96
        s_getpc_b64 s[82:83]
        L_pc:
        v_lshlrev_b32 v2, 7, v0
        v_min_u32 v2, L_code_end-L_pc-4, v2
        global_load_dword v3, v2, s[82:83]
        v_lshrrev_b32 v4, 6, v0
        v_and_b32 v{vLANE}, 63, v0
        v_subrev_u32 v0, 64, v0
        v_readfirstlane_b32 s{sWAVE}, v4
        v_lshlrev_b32 v5, 2, v0
        s_mov_b32 s{sW}, s2
        s_and_b32 s84, s2, 7
        s_lshr_b32 s85, s2, 3
        s_mul_i32 s86, s84, 20
        s_add_u32 s{sIDX}, s86, s85
        s_mov_b32 s{sCLS}, 1
        s_mul_i32 s86, s84, 6
        s_add_u32 s86, s86, s85
        s_sub_u32 s86, s86, 20
        s_cmp_ge_u32 s85, 20
        s_cselect_b32 s{sIDX}, s86, s{sIDX}
        s_cselect_b32 s{sCLS}, 2, s{sCLS}
        s_mul_i32 s86, s84, 5
        s_add_u32 s86, s86, s85
        s_sub_u32 s86, s86, 26
        s_cmp_ge_u32 s85, 26
        s_cselect_b32 s{sIDX}, s86, s{sIDX}
        s_cselect_b32 s{sCLS}, 3, s{sCLS}
        s_cmp_ge_u32 s85, 31
        s_cselect_b32 s{sCLS}, 0, s{sCLS}
        s_mul_i32 s87, s2, 10240
        s_add_u32 s88, s87, 5120
        s_sub_u32 s{sWAVE}, s{sWAVE}, 1
        v_mov_b32 v6, {EPOCH}
        s_mov_b32 s86, 0xffff0000
        """)
        if self.stamps:
            a("v_mov_b32 v254, 0")
            self.stamp(0)
        a("s_waitcnt lgkmcnt(0)")
        srd(a, sQ, 4, 2621440)
        srd(a, sWS, 30, WS_USED)
        if self.probe == "xcc":
            a("s_getreg_b32 s96, hwreg(HW_REG_XCC_ID)\ns_and_b32 s96, s96, 15\ns_and_b32 s97, s2, 7\ns_cmp_lg_u32 s96, s97\ns_cselect_b32 s101, 2000, 0")
        if self.probe == "skew":
            a("v_mov_b32 v8, s98\nv_mov_b32 v9, 0\ns_mov_b64 exec, 1\nglobal_atomic_umax v9, v8, s[28:29] sc1\ns_mov_b64 exec, -1")
        a(f"s_cmp_eq_u32 s{sWAVE}, -1\ns_cbranch_scc1 L_aux")

    def aux_stats(self):
        a = self.a
        XF, WF, D1, D3 = 64, 128, 112, 116
        a(f"""
        s_setprio 2
        v_and_b32 v4, 7, v{vLANE}
        v_mul_u32_u24 v4, 1280, v4
        v_bfe_u32 v8, v{vLANE}, 3, 1
        v_mul_u32_u24 v8, 640, v8
        v_lshrrev_b32 v9, 4, v{vLANE}
        v_lshlrev_b32 v9, 4, v9
        v_add3_u32 v4, v4, v8, v9
        """)
        for s in range(10):
            a(f"buffer_load_dwordx4 {q4(XF+4*s)}, v4, s[{sQ}:{sQ+3}], s87 offen offset:{64*s}")
        a(f"""
        v_and_b32 v8, 15, v{vLANE}
        v_cmp_eq_u32 vcc, 2, v8
        v_mov_b32 v4, 640
        v_cndmask_b32 v4, 0, v4, vcc
        v_add_u32 v4, v4, v9
        """)
        for s in range(10):
            a(f"global_load_dwordx4 {q4(WF+4*s)}, v4, s[18:19] offset:{64*s}")
        a(f"""
        buffer_load_dword v7, v6, {WS}, 0 offen sc1
        v_cmp_eq_u32 vcc, 0, v8
        v_mov_b32 v9, {ONES}
        v_mov_b32 v42, 0
        v_mov_b32 v43, 0
        s_lshl_b32 s85, s{sW}, 3
        v_and_b32 v8, 7, v{vLANE}
        v_add_u32 v8, s85, v8
        s_waitcnt vmcnt(11)
        """)
        self.stamp(1)
        for i in range(20):
            a(f"v_dot2c_f32_bf16 v42, v{XF+2*i}, v{XF+2*i}\nv_dot2c_f32_bf16 v43, v{XF+2*i+1}, v{XF+2*i+1}")
        a("s_waitcnt vmcnt(1)")
        for s in range(10):
            for d in range(4):
                a(f"v_cndmask_b32 v{WF+4*s+d}, v{WF+4*s+d}, v9, vcc")
            if s:
                p = s - 1
                a(f"v_mfma_f32_16x16x32_bf16 {q4(D1)}, {q4(WF+4*p)}, {q4(XF+4*p)}, " + ("0" if p == 0 else q4(D1)))
                a(f"v_mfma_f32_16x16x32_bf16 {q4(D3)}, {q4(WF+4*p)}, {q4(WF+4*p)}, " + ("0" if p == 0 else q4(D3)))
        a("v_add_f32 v42, v42, v43")
        a(f"v_mfma_f32_16x16x32_bf16 {q4(D1)}, {q4(WF+36)}, {q4(XF+36)}, {q4(D1)}")
        a(f"v_mfma_f32_16x16x32_bf16 {q4(D3)}, {q4(WF+36)}, {q4(WF+36)}, {q4(D3)}")
        self.xlane_sum(42, 43)
        a(f"""
        v_sub_u32 v104, 2047, v8
        v_lshlrev_b32 v4, 3, v8
        v_lshlrev_b32 v6, 4, v8
        s_mov_b32 s84, 0x3acccccd
        v_add_f32_dpp v45, v42, v42 row_ror:8 row_mask:0xf bank_mask:0xf
        s_waitcnt vmcnt(0)
        """)
        self.make_tag()
        a(f"""
        v_add_f32_dpp v44, v{D1}, v{D1} row_ror:8 row_mask:0xf bank_mask:0xf
        v_add_f32_dpp v46, v{D1+2}, v{D1+1} row_ror:8 row_mask:0xf bank_mask:0xf
        v_readlane_b32 s90, v{D3}, 1
        v_readlane_b32 s91, v{D3}, 2
        v_pk_mul_f32 v[44:45], v[44:45], s[84:85] op_sel_hi:[1,0]
        v_mov_b32 v47, s90
        v_fma_f32 v45, -v44, v44, v45
        v_add_f32 v47, s91, v47
        v_max_f32 v45, 0, v45
        v_cvt_pk_bf16_f32 v48, v44, v45
        v_lshlrev_b32 v100, 16, v48
        v_and_b32 v45, s86, v48
        v_add_f32 v45, 0x3727c5ac, v45
        v_cvt_pk_bf16_f32 v48, v45, v45
        v_and_b32 v45, s86, v48
        v_sqrt_f32 v45, v45
        v_fma_f32 v46, -v100, v47, v46
        v_cvt_pk_bf16_f32 v48, v45, v45
        v_and_b32 v45, s86, v48
        v_rcp_f32 v101, v45
        v_mov_b32 v103, s{sT}
        v_mul_f32 v46, v46, v101
        v_cvt_pk_bf16_f32 v48, v46, v46
        v_and_b32 v102, s86, v48
        v_ashrrev_i32 v49, 31, v102
        v_or_b32 v49, 0x80000000, v49
        v_xor_b32 v49, v102, v49
        v_and_or_b32 v104, v49, s86, v104
        v_mov_b32 v105, s{sT}
        s_mov_b32 s84, {RBOX}
        s_mov_b32 s85, {STBOX}
        v_lshlrev_b32 v8, 4, v{vLANE}
        s_mov_b64 exec, 0xff
        buffer_store_dwordx2 v[104:105], v4, {WS}, s84 offen sc1
        buffer_store_dwordx4 v[100:103], v6, {WS}, s85 offen sc1
        ds_write_b128 v8, v[100:103] offset:{STAT}
        s_mov_b64 exec, -1
        s_setprio 0
        """)
        self.stamp(2)
        a("s_waitcnt lgkmcnt(0)\ns_barrier")

    def touch(self):
        a = self.a
        L4, GO, NO = (self.lab(x) for x in ("t_down", "t_go", "t_no"))
        a(f"""
        s_and_b32 s84, s2, 7
        s_lshr_b32 s85, s2, 3
        s_cmp_ge_u32 s85, 18
        s_cbranch_scc1 {NO}
        s_mov_b32 s{sRA+2}, 1966080
        s_mov_b32 s{sRA+3}, 0x20000
        s_cmp_ge_u32 s85, 10
        s_cbranch_scc1 {L4}
        s_cmp_ge_u32 s85, 5
        s_cselect_b32 s{sRA}, s22, s20
        s_cselect_b32 s{sRA+1}, s23, s21
        s_cselect_b32 s91, 5, 0
        s_sub_u32 s85, s85, s91
        s_mul_i32 s91, s84, 384
        s_movk_i32 s92, 21846
        s_mov_b32 s93, 3
        s_movk_i32 s94, 3072
        s_mov_b32 s90, {64 * 3072}
        s_branch {GO}
        {L4}:
        s_mov_b32 s{sRA}, s24
        s_mov_b32 s{sRA+1}, s25
        s_sub_u32 s85, s85, 10
        s_mul_i32 s91, s84, 160
        s_andn2_b32 s91, s91, 127
        s_mov_b32 s92, 0x8000
        s_mov_b32 s93, 2
        s_movk_i32 s94, 1280
        s_mov_b32 s90, {96 * 1280}
        {GO}:
        s_mul_i32 s85, s85, 384
        """)
        for i in range(3):
            a(f"""
            v_add_u32 v4, s85, v{vLANE}
            v_mul_lo_u32 v6, v4, s92
            v_lshrrev_b32 v6, 16, v6
            v_mul_u32_u24 v8, s93, v6
            v_sub_u32 v4, v4, v8
            v_mul_u32_u24 v6, s94, v6
            v_lshl_add_u32 v4, v4, 7, v6
            v_add_u32 v4, s91, v4
            buffer_load_dword v9, v4, s[{sRA}:{sRA+3}], 0 offen
            buffer_load_dword v9, v4, s[{sRA}:{sRA+3}], s90 offen
            s_add_u32 s85, s85, 64
            """)
        a(f"{NO}:")

    def select(self):
        a = self.a
        K0 = 64
        KY = [K0 + 2 * i for i in range(32)]
        RK, DONE = self.lab("sel_rank"), self.lab("sel_done")
        a(f"""
        v_lshlrev_b32 v4, 4, v{vLANE}
        s_mov_b32 s84, {RBOX}
        s_mov_b32 s85, {RBOX + 4096}
        s_mov_b32 s90, {RBOX + 8192}
        s_mov_b32 s91, {RBOX + 12288}
        """)
        self.poll([f"buffer_load_dwordx4 {q4(K0+4*k)}, v4, {WS}, s{(84, 85, 90, 91)[k // 4]} offen offset:{1024*(k%4)} sc1" for k in range(16)],
                  [k + 1 for k in KY], 42, self.nap)
        self.stamp(6)
        a(f"v_max3_u32 v60, v{KY[0]}, v{KY[1]}, v{KY[2]}\nv_max3_u32 v61, v{KY[3]}, v{KY[4]}, v{KY[5]}")
        for i in range(6, 30, 4):
            a(f"v_max3_u32 v60, v60, v{KY[i]}, v{KY[i+1]}\nv_max3_u32 v61, v61, v{KY[i+2]}, v{KY[i+3]}")
        a(f"v_max3_u32 v60, v60, v{KY[30]}, v{KY[31]}\nv_and_b32 v8, 15, v{vLANE}\nv_max_u32 v60, v60, v61\nv_lshlrev_b32 v8, 2, v8")
        self.xlane_sum(60, 61, "v_max_u32")
        a(f"{RK}:\nv_mov_b32 v63, 0\nds_write_b32 v8, v63 offset:{SEL_C}")
        self.rank16(60, 62, 63)
        a(f"""
        v_cmp_eq_u32 vcc, 8, v62
        s_mov_b32 s90, 0
        s_ff1_i32_b64 s84, vcc
        v_readlane_b32 s85, v60, s84
        """)
        for i in range(32):
            L = self.lab("nc")
            a(f"""
            v_cmp_le_u32 vcc, s85, v{KY[i]}
            s_cbranch_vccz {L}
            v_mbcnt_lo_u32_b32 v62, vcc_lo, 0
            v_mbcnt_hi_u32_b32 v62, vcc_hi, v62
            v_add_u32 v62, s90, v62
            s_bcnt1_i32_b64 s91, vcc
            v_min_u32 v62, 16, v62
            s_add_u32 s90, s90, s91
            v_lshlrev_b32 v62, 2, v62
            s_mov_b64 exec, vcc
            ds_write_b32 v62, v{KY[i]} offset:{SEL_C}
            s_mov_b64 exec, -1
            {L}:
            """)
        a(f"""
        ds_read_b32 v60, v8 offset:{SEL_C}
        s_cmp_gt_u32 s90, 16
        s_waitcnt lgkmcnt(0)
        s_cbranch_scc1 {RK}
        """)
        self.stamp(7)

    def aux_conv(self):
        a = self.a
        self.touch()
        a("s_barrier")
        self.skip_mask()
        a(f"v_mov_b32 v4, {SKIP}\nds_write_b32 v4, v6\ns_waitcnt lgkmcnt(0)\ns_barrier")

    def aux_ffn1(self):
        a = self.a
        NI = self.lab("noidx")
        self.select()
        a(f"""
        s_barrier
        v_and_b32 v4, 2047, v60
        v_sub_u32 v86, 2047, v4
        v_lshlrev_b32 v43, 4, v86
        s_mov_b32 s89, {STBOX}
        """)
        st = [f"buffer_load_dwordx4 v[80:83], v43, {WS}, s89 offen sc1"]
        a(st[0])
        self.rank16(60, 62, 63)
        a(f"v_sub_u32 v62, 15, v62\nv_and_b32 v84, 15, v{vLANE}\nv_mov_b32 v87, s{sT}")
        self.poll(st, [83], 44, first=False)
        a(f"""
        v_mov_b32 v85, v81
        v_lshlrev_b32 v63, 4, v62
        ds_write_b128 v63, v[84:87] offset:{SEL_T}
        s_cmp_lg_u32 s{sIDX}, 0
        s_cbranch_scc1 {NI}
        v_lshlrev_b32 v43, 3, v62
        v_cmp_gt_u32 vcc, 8, v62
        s_mov_b32 s85, {IDXBOX}
        s_and_b64 exec, vcc, 0xffff
        buffer_store_dwordx2 v[86:87], v43, {WS}, s85 offen sc1
        s_mov_b64 exec, 1
        v_mov_b32 v43, {EPOCH}
        buffer_store_dword v87, v43, {WS}, 0 offen sc1
        s_mov_b64 exec, -1
        {NI}:
        s_waitcnt lgkmcnt(0)
        s_barrier
        """)

    def aux_ffn2(self):
        a = self.a
        self.select()
        self.rank16(60, 62, 63)
        a(f"""
        v_sub_u32 v62, 15, v62
        v_lshlrev_b32 v62, 4, v62
        ds_write_b32 v62, v60 offset:{SEL_T}
        v_and_b32 v4, 7, v{vLANE}
        v_lshlrev_b32 v4, 4, v4
        ds_read_b32 v60, v4 offset:{SEL_T}
        v_lshrrev_b32 v6, 4, v{vLANE}
        s_lshl_b32 s84, s{sIDX}, 5
        s_mov_b32 s89, {STBOX}
        s_waitcnt lgkmcnt(0)
        v_and_b32 v4, 2047, v60
        v_sub_u32 v61, 2047, v4
        v_mul_u32_u24 v62, 1280, v61
        v_lshl_add_u32 v62, v6, 3, v62
        v_add_u32 v62, s84, v62
        buffer_load_dwordx2 v[120:121], v62, s[{sQ}:{sQ+3}], 0 offen
        v_lshlrev_b32 v43, 4, v61
        """)
        self.poll([f"buffer_load_dwordx4 v[80:83], v43, {WS}, s89 offen sc1"], [83], 44)
        srd(a, sOUT, 26, 2621440)
        a(f"""
        s_mov_b32 s84, 0xbfb8aa3b
        v_mul_f32 v42, s84, v82
        v_exp_f32 v42, v42
        v_lshlrev_b32 v116, 16, v120
        v_and_b32 v117, s86, v120
        v_add_f32 v42, 1.0, v42
        v_rcp_f32 v42, v42
        v_lshlrev_b32 v118, 16, v121
        v_and_b32 v119, s86, v121
        v_cvt_pk_bf16_f32 v42, v42, v42
        v_and_b32 v82, s86, v42
        """)
        X4 = [112, 113, 114, 115]
        U4 = [128, 129, 130, 131]
        for i in range(4):
            a(f"v_sub_f32 v{112+i}, v{116+i}, v80")
        self.rnd(X4, 42)
        for i in range(4):
            a(f"v_mul_f32 v{112+i}, v{112+i}, v81")
        self.rnd(X4, 42)
        a(f"""
        v_lshrrev_b32 v4, 3, v61
        v_mul_u32_u24 v122, 10240, v4
        v_lshl_add_u32 v122, v6, 5, v122
        s_lshl_b32 s85, s{sIDX}, 7
        s_add_u32 s85, s85, {YMAIN}
        v_add_u32 v122, s85, v122
        v_and_b32 v8, 1, v4
        v_lshrrev_b32 v4, 1, v4
        v_mul_u32_u24 v4, 10240, v4
        v_lshl_add_u32 v4, v8, 5, v4
        v_lshrrev_b32 v8, 1, v6
        v_lshl_add_u32 v4, v8, 7, v4
        v_and_b32 v8, 1, v6
        v_lshl_add_u32 v4, v8, 4, v4
        s_lshl_b32 s85, s{sIDX}, 8
        s_add_u32 s85, s85, {YEXT}
        v_add_u32 v123, s85, v4
        v_bfe_u32 v4, v61, 1, 2
        v_cmp_eq_u32 s[92:93], 1, v4
        v_cmp_eq_u32 s[66:67], 2, v4
        v_cmp_eq_u32 s[68:69], 3, v4
        v_and_b32 v4, 1, v61
        v_lshlrev_b32 v4, 4, v4
        v_sub_u32 v124, 16, v4
        v_lshlrev_b32 v4, 9, v{vLANE}
        v_add_u32 v8, 32768, v4
        v_min_u32 v8, {95 * 512}, v8
        s_mov_b32 s85, {HBOX}
        s_movk_i32 s91, 5120
        """)
        self.poll([f"buffer_load_dword v46, v4, {WS}, s85 offen offset:8 sc1",
                   f"buffer_load_dword v47, v8, {WS}, s85 offen offset:8 sc1"], [46, 47], 44, self.nap)
        self.stamp(13)
        a(f"s_barrier\nv_lshlrev_b32 v4, 4, v{vLANE}\ns_barrier")
        for wv in range(4):
            a(f"ds_read_b128 {q4(128+4*wv)}, v4 offset:{BIG + 49152 + 1024*wv}")
        a("s_waitcnt lgkmcnt(0)")
        a(f"v_pk_add_f32 {pr(128)}, {pr(128)}, {pr(132)}\nv_pk_add_f32 {pr(130)}, {pr(130)}, {pr(134)}")
        a(f"v_pk_add_f32 {pr(136)}, {pr(136)}, {pr(140)}\nv_pk_add_f32 {pr(138)}, {pr(138)}, {pr(142)}")
        a(f"v_pk_add_f32 {pr(128)}, {pr(128)}, {pr(136)}\nv_pk_add_f32 {pr(130)}, {pr(130)}, {pr(138)}")
        self.rnd(U4, 42)
        for i in range(4):
            a(f"v_mul_f32 v{128+i}, v{128+i}, v82")
        self.rnd(U4, 42)
        for i in range(4):
            a(f"v_add_f32 v{128+i}, v{128+i}, v{112+i}")
        self.rnd(U4, 42)
        self.silu(U4, [132, 133, 134, 135])
        self.rnd(U4, 42)
        self.stamp(8)
        loads = []
        for i in range(4):
            loads.append(f"buffer_load_dwordx4 {q4(136+4*i)}, v122, {WS}, {('0', 's91')[i & 1]} offen offset:{16*(i>>1)} sc1")
            loads.append(f"buffer_load_dwordx2 {pr(152+2*i)}, v123, {WS}, 0 offen offset:{64*(i&1) + 8*(i>>1)} sc1")
        self.poll(loads, [139 + 4 * i for i in range(4)] + [153 + 2 * i for i in range(4)], 42, 2)
        self.stamp(10)
        for i in range(4):
            a(f"v_cndmask_b32 v{136+4*i}, v{136+4*i}, v{137+4*i}, s[92:93]")
        for i in range(4):
            a(f"v_cndmask_b32 v{136+4*i}, v{136+4*i}, v{138+4*i}, s[66:67]")
        for i in range(4):
            a(f"v_cndmask_b32 v{136+4*i}, v{136+4*i}, v{152+2*i}, s[68:69]")
        for i in range(4):
            a(f"v_lshlrev_b32 v{136+4*i}, v124, v{136+4*i}\nv_and_b32 v{136+4*i}, s86, v{136+4*i}\nv_mul_f32 v{112+i}, v{112+i}, v{136+4*i}")
        self.rnd(X4, 42)
        for i in range(4):
            a(f"v_mul_f32 v{112+i}, v{112+i}, v{128+i}")
        self.rnd(X4, 42)
        for i in range(4):
            a(f"v_add_f32 v{112+i}, v{112+i}, v{116+i}")
        a(f"""
        v_cvt_pk_bf16_f32 v112, v112, v113
        v_cvt_pk_bf16_f32 v113, v114, v115
        s_mov_b32 s82, 0x00ff00ff
        s_mov_b32 exec_lo, s82
        s_mov_b32 exec_hi, s82
        buffer_store_dwordx2 v[112:113], v62, s[{sOUT}:{sOUT+3}], 0 offen nt
        s_mov_b64 exec, -1
        """)
        self.stamp(11)

    def kv(self):
        a, ld = self.a, self.ld
        KF, SH, ACC, VF, G = 74, 96, 104, 120, 42
        srd(a, sKK, 6, 2621440)
        srd(a, sVV, 8, 2621440)
        a(f"""
        s_sub_u32 s89, s87, 3840
        s_cmp_eq_u32 s{sW}, 0
        s_cselect_b32 s89, 0, s89
        s_cselect_b32 s90, 0, -1
        buffer_load_dword v7, v6, {WS}, 0 offen sc1
        v_lshlrev_b32 v6, 4, v0
        global_load_dwordx4 {q4(vSH)}, v6, s[10:11]
        """)
        for r in range(3):
            a(f"buffer_load_dword v{vK+r}, v5, s[{sKK}:{sKK+3}], s89 offen offset:{r * 1280} {ld}")
        for r in range(8):
            a(f"buffer_load_dword v{vK+3+r}, v5, s[{sKK}:{sKK+3}], s{87 + r // 4} offen offset:{(r % 4) * 1280} {ld}")
        for r in range(8):
            a(f"buffer_load_dword v{vV+r}, v5, s[{sVV}:{sVV+3}], s{87 + r // 4} offen offset:{(r % 4) * 1280} {ld}")
        a(f"""
        v_lshrrev_b32 v4, 2, v0
        v_mul_u32_u24 v4, 49152, v4
        v_and_b32 v6, 3, v0
        v_lshl_add_u32 v4, v6, 4, v4
        s_lshl_b32 s84, s{sW}, 6
        s_add_u32 s91, s84, 16384
        s_add_u32 s89, s84, 32768
        s_waitcnt vmcnt(19)
        """)
        self.make_tag()
        for j in range(4):
            for c in range(2):
                src = vSH + 2 * c + j // 2
                a(f"v_lshlrev_b32 v{SH+2*j+c}, 16, v{src}" if j % 2 == 0 else f"v_and_b32 v{SH+2*j+c}, s86, v{src}")
        a("s_waitcnt vmcnt(8)")
        self.stamp(1)
        for r in range(8):
            a(f"buffer_load_dword v{vQ+r}, v5, s[{sQ}:{sQ+3}], s{87 + r // 4} offen offset:{(r % 4) * 1280}")
        for r in range(3):
            a(f"v_and_b32 v{vK+r}, s90, v{vK+r}")
        for r in range(11):
            a(f"v_lshlrev_b32 v{KF+2*r}, 16, v{vK+r}\nv_and_b32 v{KF+2*r+1}, s86, v{vK+r}")
        for r in range(8):
            a(f"v_pk_mul_f32 {pr(ACC+2*r)}, {pr(KF+2*r)}, {pr(SH+6)}")
        for j in (2, 1, 0):
            for r in range(8):
                a(f"v_pk_fma_f32 {pr(ACC+2*r)}, {pr(KF+2*(r+3-j))}, {pr(SH+2*j)}, {pr(ACC+2*r)}")
        for g in (3, 7, 9, 11):
            a(f"v_mov_b32 v{G+g}, s{sT}")
        a("s_waitcnt vmcnt(8)")
        self.stamp(3)
        for r in range(8):
            a(f"v_lshlrev_b32 v{VF+2*(r%4)}, 16, v{vV+r}\nv_and_b32 v{VF+2*(r%4)+1}, s86, v{vV+r}")
            a(f"v_pk_mul_f32 {pr(ACC+2*r)}, {pr(ACC+2*r)}, {pr(VF+2*(r%4))}")
        for c in range(2):
            for d in range(4):
                dst = G + 4 * c + d if d < 3 else G + 8 + 2 * c
                a(f"v_cvt_pk_bf16_f32 v{dst}, v{ACC+2*(7-2*d)+c}, v{ACC+2*(6-2*d)+c}")
        a(f"""
        buffer_store_dwordx4 {q4(G)}, v4, {WS}, s84 offen sc1
        buffer_store_dwordx4 {q4(G+4)}, v4, {WS}, s91 offen sc1
        buffer_store_dwordx4 {q4(G+8)}, v4, {WS}, s89 offen sc1
        """)
        self.stamp(4)
        a(f"""
        v_and_b32 v6, 7, v{vLANE}
        v_lshlrev_b32 v6, 4, v6
        s_barrier
        ds_read_b64 v[100:101], v6 offset:{STAT}
        """)

    def p3_pre(self, behind):
        a = self.a
        T = 200
        a("s_waitcnt lgkmcnt(0)")
        for r in range(8):
            a(f"v_readlane_b32 s{sST+2*r}, v100, {r}\nv_readlane_b32 s{sST+2*r+1}, v101, {r}")
        a(f"s_mov_b32 s84, 0xbfb8aa3b\ns_waitcnt vmcnt({behind})")
        for r in range(8):
            a(f"v_lshlrev_b32 v{vX+2*r}, 16, v{vQ+r}\nv_and_b32 v{vX+2*r+1}, s86, v{vQ+r}")
        for h in range(2):
            rows = range(4 * h, 4 * h + 4)
            t = lambda r, k: T + 6 * (r % 4) + k
            steps = [
                lambda r: f"v_pk_add_f32 {pr(t(r,0))}, {pr(vX+2*r)}, s[{sST+2*r}:{sST+2*r+1}] op_sel_hi:[1,0] neg_lo:[0,1] neg_hi:[0,1]",
                lambda r: f"v_cvt_pk_bf16_f32 v{t(r,2)}, v{t(r,0)}, v{t(r,1)}",
                lambda r: f"v_lshlrev_b32 v{t(r,0)}, 16, v{t(r,2)}\nv_and_b32 v{t(r,1)}, s86, v{t(r,2)}",
                lambda r: f"v_pk_mul_f32 {pr(t(r,0))}, {pr(t(r,0))}, s[{sST+2*r}:{sST+2*r+1}] op_sel:[0,1] op_sel_hi:[1,1]",
                lambda r: f"v_cvt_pk_bf16_f32 v{t(r,2)}, v{t(r,0)}, v{t(r,1)}",
                lambda r: f"v_lshlrev_b32 v{t(r,0)}, 16, v{t(r,2)}\nv_and_b32 v{t(r,1)}, s86, v{t(r,2)}",
                lambda r: f"v_pk_mul_f32 {pr(t(r,2))}, {pr(t(r,0))}, s[84:85] op_sel_hi:[1,0]",
                lambda r: f"v_exp_f32 v{t(r,2)}, v{t(r,2)}\nv_exp_f32 v{t(r,3)}, v{t(r,3)}",
                lambda r: f"v_pk_add_f32 {pr(t(r,2))}, {pr(t(r,2))}, 1.0 op_sel_hi:[1,0]",
                lambda r: f"v_rcp_f32 v{t(r,2)}, v{t(r,2)}\nv_rcp_f32 v{t(r,3)}, v{t(r,3)}",
                lambda r: f"v_pk_mul_f32 {pr(t(r,2))}, {pr(t(r,2))}, {pr(t(r,0))}",
                lambda r: f"v_cvt_pk_bf16_f32 v{t(r,4)}, v{t(r,2)}, v{t(r,3)}",
                lambda r: f"v_lshlrev_b32 v{t(r,2)}, 16, v{t(r,4)}\nv_and_b32 v{t(r,3)}, s86, v{t(r,4)}",
                lambda r: f"v_pk_mul_f32 {pr(vC+2*r)}, {pr(t(r,0))}, {pr(t(r,2))}",
            ]
            for st in steps:
                for r in rows:
                    a(st(r))

    def conv(self):
        a, ld = self.a, self.ld
        ACC = 192
        SET = [(64, 96), (128, 160)]
        W4, W4B, M4, E4 = (self.lab(x) for x in ("conv_w4", "conv_w4b", "conv_m4", "conv_e4"))
        a(f"""
        s_cmp_eq_u32 s{sWAVE}, 4
        s_cbranch_scc1 {W4}
        s_lshr_b32 s91, s{sIDX}, 1
        s_lshl_b32 s91, s91, 3
        s_and_b32 s92, s{sIDX}, 1
        s_add_u32 s91, s91, s92
        s_lshl_b32 s92, s{sWAVE}, 1
        s_add_u32 s91, s91, s92
        s_lshl_b32 s92, s91, 1
        s_and_b32 s93, s92, 2
        s_lshl_b32 s93, s93, 3
        s_andn2_b32 s92, s92, 3
        s_load_dword s94, s[14:15], s92
        s_lshl_b32 s91, s91, 12
        """)
        srd(a, sRA, 12, 2621440)
        a(f"""
        v_lshlrev_b32 v6, 4, v{vLANE}
        v_add_u32 v6, s91, v6
        v_subrev_u32 v8, 8, v6
        v_max_i32 v4, 0, v8
        """)
        for it in range(4):
            a(f"buffer_load_dwordx4 {q4(vR+8*it+4)}, v6, s[{sRA}:{sRA+3}], 0 offen offset:{it*1024} {ld}")
            if it == 0:
                a(f"buffer_load_dwordx2 {pr(vR+2)}, v4, s[{sRA}:{sRA+3}], 0 offen {ld}")
            else:
                a(f"buffer_load_dwordx2 {pr(vR+8*it+2)}, v6, s[{sRA}:{sRA+3}], 0 offen offset:{it*1024-8} {ld}")
        self.p3_pre(11)
        a(f"""
        v_mov_b32 v44, 0
        v_mov_b32 v45, 0
        v_mov_b32 v46, 0
        v_mov_b32 v47, 0
        s_mul_i32 s85, s{sWAVE}, {XS}
        s_add_u32 s85, s85, {XB}
        v_min_u32 v4, 29, v{vLANE}
        v_lshl_add_u32 v4, v4, 4, s85
        ds_write_b128 v4, v[44:47]
        s_mul_i32 s84, s{sWAVE}, {HC_S}
        s_add_u32 s84, s84, {HC0}
        v_and_b32 v6, 7, v{vLANE}
        v_lshrrev_b32 v4, 1, v6
        v_mul_u32_u24 v4, {HC_K}, v4
        v_and_b32 v6, 1, v6
        v_lshl_add_u32 v4, v6, 4, v4
        v_add_u32 v4, s84, v4
        ds_write_b128 v4, v[44:47]
        s_lshr_b32 s94, s94, s93
        s_and_b32 s94, s94, 0xffff
        v_lshrrev_b32 v6, 4, v{vLANE}
        v_and_b32 v8, 15, v{vLANE}
        v_lshlrev_b32 v4, 3, v6
        v_add_u32 v4, v4, v8
        v_sub_u32 v4, 15, v4
        v_and_b32 v42, 1, v4
        v_lshlrev_b32 v42, 4, v42
        v_lshlrev_b32 v42, v42, s94
        v_ashrrev_i32 v4, 1, v4
        """)
        for d in range(4):
            a(f"v_cmp_eq_u32 vcc, {d}, v4\nv_cndmask_b32 v{224+d}, 0, v42, vcc")
        a(f"""
        v_add_u32 v4, 1, v8
        v_sub_u32 v42, 0, v4
        v_and_b32 v42, 3, v42
        v_add_u32 v4, v4, v42
        v_lshl_add_u32 v4, v6, 3, v4
        v_mul_u32_u24 v42, {HC_K}, v42
        v_lshl_add_u32 v4, v4, 1, v42
        v_add_u32 v228, s84, v4
        v_lshlrev_b32 v4, 1, v8
        v_sub_u32 v4, v4, v6
        v_add_u32 v4, 31, v4
        v_lshl_add_u32 v229, v4, 4, s85
        v_lshlrev_b32 v4, 4, v{vLANE}
        v_add_u32 v4, s84, v4
        v_cmp_ne_u32 vcc, 0, v{vLANE}
        s_waitcnt vmcnt(0)
        v_cndmask_b32 v{vR+2}, 0, v{vR+2}, vcc
        v_cndmask_b32 v{vR+3}, 0, v{vR+3}, vcc
        s_lshr_b32 s84, s{sIDX}, 1
        s_mul_i32 s84, s84, 49152
        s_and_b32 s85, s{sIDX}, 1
        s_lshl_b32 s90, s85, 14
        s_add_u32 s90, s90, s84
        s_lshl_b32 s85, s85, 3
        s_add_u32 s85, s85, s84
        s_add_u32 s85, s85, 32768
        v_lshlrev_b32 v2, 4, v0
        v_add_u32 v3, s85, v2
        v_add_u32 v2, s90, v2
        s_movk_i32 s84, 0x1000
        s_movk_i32 s85, 0x2000
        s_movk_i32 s90, 0x3000
        """)
        so = ["0", "s84", "s85", "s90"]
        loads = []
        for k in range(4):
            loads.append(f"buffer_load_dwordx4 {q4(96+4*k)}, v2, {WS}, {so[k]} offen sc1")
            loads.append(f"buffer_load_dwordx2 {pr(112+2*k)}, v3, {WS}, {so[k]} offen sc1")
        self.stamp(13)
        for l in loads:
            a(l)
        for it in range(4):
            W = vR + 8 * it + 4
            O = 48 + 12 * (it % 2)
            a(f"ds_write_b128 v4, {q4(W)} offset:{32 + 1024*it}")
            for d in range(4):
                a(f"v_alignbyte_b32 v{O+d}, v{W+d}, v{W+d-1}, 2")
            for d in range(4):
                a(f"v_mov_b32 v{O+4+d}, v{W+d-1}")
            for d in range(4):
                a(f"v_alignbyte_b32 v{O+8+d}, v{W+d-1}, v{W+d-2}, 2")
            for k in range(1, 4):
                a(f"ds_write_b128 v4, {q4(O+4*(k-1))} offset:{k*HC_K + 32 + 1024*it}")
        a(f"""
        v_and_b32 v4, 3, v0
        v_mul_u32_u24 v4, {XS}, v4
        v_lshrrev_b32 v6, 2, v0
        v_lshl_add_u32 v4, v6, 4, v4
        """)
        self.stamp(5)
        self.poll(loads, [99 + 4 * k for k in range(4)] + [113 + 2 * k for k in range(4)], 42, self.nap, first=False)
        self.stamp(6)
        for k in range(4):
            a(f"v_mov_b32 v{99+4*k}, v{112+2*k}")
        for k in range(4):
            a(f"ds_write_b128 v4, {q4(96+4*k)} offset:{XB + 480 + 1024*k}")
        a(f"s_branch {W4B}\n{W4}:")
        self.p3_pre(3)
        a(f"{W4B}:\ns_waitcnt lgkmcnt(0)\ns_barrier")
        self.stamp(14)
        a(f"s_cmp_eq_u32 s{sWAVE}, 4\ns_cbranch_scc1 {M4}")

        def reads(s):
            A, B = SET[s]
            out = []
            for i in range(8):
                out.append(f"ds_read_b128 {q4(B+4*(7-i))}, v229 offset:{512*(7-i)}")
                out.append(f"ds_read_b64 {pr(A+4*i)}, v228 offset:{512*i}")
                out.append(f"ds_read_b64 {pr(A+4*i+2)}, v228 offset:{512*i+8}")
            return out

        def mfmas(s):
            A, B = SET[s]
            return [f"v_mfma_f32_16x16x32_bf16 {q4(ACC+4*(x+y))}, {q4(A+4*x)}, {q4(B+4*y)}, {q4(ACC+4*(x+y))}"
                    for x in range(8) for y in range(7 - x, -1, -1)]

        rd = reads(0)
        rb, ra = rd[0::3], [r for i, r in enumerate(rd) if i % 3]
        for r in rb + ra[:6]:
            a(r)
        a("s_waitcnt lgkmcnt(6)")
        for i, b in enumerate(range(7, -1, -1)):
            a(f"v_mfma_f32_16x16x32_bf16 {q4(ACC+4*b)}, v[224:227], {q4(96+4*b)}, 0")
            for r in ra[6 + 2 * i: 8 + 2 * i]:
                a(r)
        a("v_add_u32 v228, 64, v228\nv_subrev_u32 v229, 64, v229\ns_mov_b32 s84, 0\ns_waitcnt lgkmcnt(0)")
        LP = self.lab("conv_loop")
        body = Asm()
        for s in range(2):
            rd, mf = reads(1 - s), mfmas(s)
            for i, m in enumerate(mf):
                body(m)
                if i < 24:
                    body(rd[i])
                if i == 26:
                    body("v_add_u32 v228, 64, v228")
                if i == 27:
                    body("v_subrev_u32 v229, 64, v229")
                if s == 1 and i == 28:
                    body("s_add_u32 s84, s84, 1")
                if s == 1 and i == 29:
                    body("s_cmp_lt_u32 s84, 4")
            body("s_waitcnt lgkmcnt(0)")
        assert hazard.check_loop(body.lines) == 0
        a(f"{LP}:")
        a.lines += body.lines
        a(f"s_cbranch_scc1 {LP}")
        self.stamp(7)
        a(f"""
        v_lshrrev_b32 v6, 4, v{vLANE}
        v_and_b32 v4, 1, v6
        v_lshlrev_b32 v4, 9, v4
        v_lshrrev_b32 v6, 1, v6
        v_lshl_add_u32 v4, v6, 8, v4
        v_and_b32 v6, 15, v{vLANE}
        v_lshl_add_u32 v4, v6, 4, v4
        s_mul_i32 s84, s{sWAVE}, {HC_S + 64}
        v_add_u32 v4, s84, v4
        """)
        for n in range(8):
            a(f"v_cvt_pk_bf16_f32 v{64+2*n}, v{ACC+4*n}, v{ACC+4*n+1}\nv_cvt_pk_bf16_f32 v{65+2*n}, v{ACC+4*n+2}, v{ACC+4*n+3}")
        for m in range(4):
            a(f"v_permlane16_swap_b32 v{64+4*m}, v{66+4*m}\nv_permlane16_swap_b32 v{65+4*m}, v{67+4*m}")
        for m in range(4):
            a(f"ds_write_b128 v4, {q4(64+4*m)} offset:{HC0 + 1024*m}")
        a(f"""
        v_and_b32 v8, 3, v0
        v_lshrrev_b32 v6, 2, v0
        v_mul_u32_u24 v2, {HC_S + 64}, v8
        v_lshrrev_b32 v42, 5, v6
        v_lshl_add_u32 v2, v42, 9, v2
        v_and_b32 v42, 1, v6
        v_lshl_add_u32 v2, v42, 8, v2
        v_bfe_u32 v43, v6, 1, 4
        v_lshl_add_u32 v2, v43, 4, v2
        v_mul_u32_u24 v4, 10240, v6
        v_lshl_add_u32 v4, v8, 4, v4
        v_lshrrev_b32 v6, 1, v6
        v_mul_u32_u24 v6, 10240, v6
        v_lshl_add_u32 v6, v42, 5, v6
        v_lshl_add_u32 v6, v8, 3, v6
        s_lshr_b32 s84, s{sIDX}, 1
        s_lshl_b32 s84, s84, 6
        s_and_b32 s85, s{sIDX}, 1
        s_mul_i32 s85, s85, 5120
        s_add_u32 s84, s84, s85
        s_add_u32 s84, s84, {YMAIN}
        s_lshl_b32 s85, s{sIDX}, 6
        s_add_u32 s85, s85, {YEXT}
        """)
        for k in range(4):
            a(f"v_mov_b32 v{81+2*k}, s{sT}")
        a(f"""
        {M4}:
        v_mov_b32 v8, {SKIP}
        s_waitcnt lgkmcnt(0)
        s_barrier
        ds_read_b32 v9, v8
        s_cmp_eq_u32 s{sWAVE}, 4
        s_cbranch_scc1 {E4}
        """)
        for k in range(4):
            a(f"ds_read_b128 {q4(64+4*k)}, v2 offset:{HC0 + 1024*k}")
        for k in range(4):
            a(f"""
            s_waitcnt lgkmcnt({3-k})
            v_mov_b32 v{80+2*k}, v{67+4*k}
            v_mov_b32 v{67+4*k}, s{sT}
            buffer_store_dwordx4 {q4(64+4*k)}, v4, {WS}, s84 offen sc1
            buffer_store_dwordx2 {pr(80+2*k)}, v6, {WS}, s85 offen sc1
            """)
            if k < 3:
                a("s_add_u32 s84, s84, 655360\ns_add_u32 s85, s85, 327680")
        a(f"{E4}:\ns_waitcnt lgkmcnt(0)\nv_readfirstlane_b32 s{sSKIP}, v9")
        self.stamp(8)

    def ffn1(self):
        a = self.a
        FR, CS, AC, QF = 128, 192, 208, 64
        FIN = self.lab("ffn1_done")
        srd(a, sRA, 20, 1966080)
        srd(a, sRB, 22, 1966080)
        a(f"""
        v_lshrrev_b32 v6, 2, v{vLANE}
        v_mul_u32_u24 v4, 3072, v6
        v_and_b32 v8, 3, v{vLANE}
        v_lshl_add_u32 v4, v8, 4, v4
        s_lshl_b32 s91, s{sIDX}, 6
        s_mul_i32 s92, s{sWAVE}, {128 * 3072}
        s_add_u32 s91, s91, s92
        """)
        for i in range(8):
            a(f"buffer_load_dwordx4 {q4(vR+4*i)}, v4, s[{sRA}:{sRA+3}], s91 offen")
            a(f"buffer_load_dwordx4 {q4(vR+32+4*i)}, v4, s[{sRB}:{sRB+3}], s91 offen")
            if i < 7:
                a(f"s_add_u32 s91, s91, {16 * 3072}")
        self.p3_pre(19)
        a(f"""
        v_lshrrev_b32 v6, 2, v{vLANE}
        v_bfe_u32 v4, v{vLANE}, 5, 1
        v_lshlrev_b32 v4, 1, v4
        v_and_b32 v8, 3, v{vLANE}
        v_xor_b32 v4, v4, v8
        v_lshlrev_b32 v4, 4, v4
        v_lshl_add_u32 v4, v6, 6, v4
        s_lshl_b32 s84, s{sWAVE}, 14
        s_add_u32 s84, s84, {BIG}
        v_add_u32 v2, s84, v4
        v_lshrrev_b32 v6, 4, v{vLANE}
        v_bfe_u32 v4, v{vLANE}, 2, 2
        v_lshl_add_u32 v4, v6, 3, v4
        v_lshlrev_b32 v4, 6, v4
        v_lshl_add_u32 v4, v8, 3, v4
        v_and_b32 v6, 1, v6
        v_lshl_add_u32 v4, v6, 5, v4
        v_add_u32 v4, s84, v4
        v_xor_b32 v6, 32, v4
        v_mov_b32 v44, {ONES}
        v_mov_b32 v45, {ONES}
        v_mov_b32 v46, {ONES}
        v_mov_b32 v47, {ONES}
        """)
        for i in range(8):
            a(f"s_waitcnt vmcnt({14 - 2*i})\nds_write_b128 v2, {q4(vR+4*i)} offset:{1024*i}\nds_write_b128 v2, {q4(vR+32+4*i)} offset:{8192 + 1024*i}")
        a("s_waitcnt lgkmcnt(0)")
        fr = lambda s, m, t: FR + 16 * s + 8 * m + 4 * t
        for s in range(4):
            for m in range(2):
                for t in range(2):
                    for hh in range(2):
                        a(f"ds_read_b64_tr_b16 {pr(fr(s,m,t)+2*hh)}, v{(4,6)[t]} offset:{8192*m + 2048*s + 256*hh}")
            a("s_waitcnt lgkmcnt(0)")
            for m in range(2):
                for t in range(2):
                    c = CS + 8 * m + 4 * t
                    a(f"v_mfma_f32_16x16x32_bf16 {q4(c)}, {q4(fr(s,m,t))}, v[44:47], " + ("0" if s == 0 else q4(c)))
        a(f"""
        v_and_b32 v8, 15, v{vLANE}
        v_lshlrev_b32 v4, 2, v8
        v_lshrrev_b32 v6, 4, v{vLANE}
        s_lshl_b32 s84, s{sWAVE}, 8
        s_mov_b32 s89, {STBOX}
        """)
        self.stamp(5)
        a(f"""
        s_barrier
        ds_read_b32 v60, v4 offset:{SEL_C}
        s_waitcnt lgkmcnt(0)
        v_and_b32 v4, 2047, v60
        v_sub_u32 v61, 2047, v4
        v_mul_u32_u24 v4, 1280, v61
        v_lshl_add_u32 v4, v6, 4, v4
        """)
        self.stamp(7)
        for s in range(4):
            a(f"buffer_load_dwordx4 {q4(QF+4*s)}, v4, s[{sQ}:{sQ+3}], s84 offen offset:{64*s}")
        a("v_lshlrev_b32 v43, 4, v61")
        self.poll([f"buffer_load_dwordx4 v[80:83], v43, {WS}, s89 offen sc1"], [83], 44)
        self.stamp(13)
        for s in range(4):
            for m in range(2):
                for t in range(2):
                    c = AC + 8 * m + 4 * t
                    a(f"v_mfma_f32_16x16x32_bf16 {q4(c)}, {q4(fr(s,m,t))}, {q4(QF+4*s)}, " + ("0" if s == 0 else q4(c)))
        a(f"""
        s_lshl_b32 s84, s{sWAVE}, 14
        s_add_u32 s84, s84, {BIG}
        v_lshlrev_b32 v4, 4, v{vLANE}
        v_add_u32 v4, s84, v4
        """)
        for q in range(4):
            for i in range(4 * q, 4 * q + 4):
                a(f"v_fma_f32 v{AC+i}, -v80, v{CS+i}, v{AC+i}")
            a(f"ds_write_b128 v4, {q4(AC+4*q)} offset:{1024*q}")
        a(f"""
        v_lshlrev_b32 v4, 4, v8
        v_and_b32 v2, 48, v{vLANE}
        s_lshl_b32 s85, s{sIDX}, 1
        s_add_u32 s85, s85, s{sWAVE}
        s_lshl_b32 s85, s85, 9
        s_add_u32 s85, s85, {HBOX}
        s_lshl_b32 s84, s{sWAVE}, 10
        s_add_u32 s84, s84, {BIG}
        s_waitcnt lgkmcnt(0)
        s_barrier
        s_cmp_ge_u32 s{sWAVE}, 2
        s_cbranch_scc1 {FIN}
        ds_read_b64 v[84:85], v4 offset:{SEL_T}
        v_lshl_add_u32 v4, v6, 7, v4
        v_mov_b32 v46, s{sT}
        v_mov_b32 v47, s{sT}
        s_waitcnt lgkmcnt(0)
        v_and_b32 v84, 15, v84
        v_add_u32 v2, v2, v84
        v_lshl_add_u32 v2, v2, 4, s84
        v_add_u32 v3, 49152, v2
        s_mov_b32 s84, 0xbfb8aa3b
        """)
        for wv in range(5):
            base, off = ("v2", 16384 * wv) if wv < 3 else ("v3", 16384 * (wv - 3))
            a(f"ds_read_b128 {q4(128+8*wv)}, {base} offset:{off}\nds_read_b128 {q4(132+8*wv)}, {base} offset:{off+2048}")
        a("s_waitcnt lgkmcnt(6)")
        for i in range(0, 8, 2):
            a(f"v_pk_add_f32 {pr(128+i)}, {pr(128+i)}, {pr(136+i)}")
        a("s_waitcnt lgkmcnt(2)")
        for i in range(0, 8, 2):
            a(f"v_pk_add_f32 {pr(144+i)}, {pr(144+i)}, {pr(152+i)}")
        for i in range(0, 8, 2):
            a(f"v_pk_add_f32 {pr(128+i)}, {pr(128+i)}, {pr(144+i)}")
        a("s_waitcnt lgkmcnt(0)")
        for i in range(0, 8, 2):
            a(f"v_pk_add_f32 {pr(128+i)}, {pr(128+i)}, {pr(160+i)}")
        for i in range(0, 8, 2):
            a(f"v_pk_mul_f32 {pr(128+i)}, {pr(128+i)}, v[84:85] op_sel:[0,1] op_sel_hi:[1,1]")
        self.rnd(list(range(128, 136)), 140)
        self.silu([128, 129, 130, 131], [136, 137, 138, 139])
        self.rnd([128, 129, 130, 131], 140)
        a(f"""
        v_pk_mul_f32 {pr(128)}, {pr(128)}, {pr(132)}
        v_pk_mul_f32 {pr(130)}, {pr(130)}, {pr(134)}
        s_mov_b32 s82, 0x00ff00ff
        v_cvt_pk_bf16_f32 v44, v128, v129
        v_cvt_pk_bf16_f32 v45, v130, v131
        s_mov_b32 exec_lo, s82
        s_mov_b32 exec_hi, s82
        buffer_store_dwordx4 v[44:47], v4, {WS}, s85 offen sc1
        s_mov_b64 exec, -1
        {FIN}:
        """)
        self.stamp(8)

    def ffn2(self):
        a = self.a
        FR, HB = 176, 64
        W4, W4B, NOTW = self.lab("ffn2_w4"), self.lab("ffn2_w4b"), self.lab("ffn2_notw")
        a(f"s_cmp_eq_u32 s{sWAVE}, 4\ns_cbranch_scc1 {W4}")
        srd(a, sRA, 24, 1966080)
        a(f"""
        v_lshrrev_b32 v6, 1, v{vLANE}
        v_mul_u32_u24 v6, 1280, v6
        v_and_b32 v8, 1, v{vLANE}
        v_lshl_add_u32 v6, v8, 4, v6
        s_lshl_b32 s91, s{sIDX}, 5
        s_mul_i32 s92, s{sWAVE}, {384 * 1280}
        s_add_u32 s91, s91, s92
        """)
        for i in range(12):
            a(f"buffer_load_dwordx4 {q4(vR+4*i)}, v6, s[{sRA}:{sRA+3}], s91 offen")
            if i < 11:
                a(f"s_add_u32 s91, s91, {32 * 1280}")
        self.p3_pre(15)
        a(f"""
        s_mul_i32 s84, s{sWAVE}, 12288
        s_add_u32 s85, s84, {BIG}
        v_lshlrev_b32 v4, 4, v{vLANE}
        v_add_u32 v4, s85, v4
        v_lshlrev_b32 v2, 3, v{vLANE}
        v_add_u32 v2, s85, v2
        """)
        for i in range(12):
            a(f"s_waitcnt vmcnt({11 - i})\nds_write_b128 v4, {q4(vR+4*i)} offset:{1024*i}")
        a("s_waitcnt lgkmcnt(0)")
        for n in range(24):
            a(f"ds_read_b64_tr_b16 {pr(FR+2*n)}, v2 offset:{512*n}")
            if n % 12 == 11:
                a("s_waitcnt lgkmcnt(0)")
        a(f"""
        v_and_b32 v4, 7, v{vLANE}
        v_lshlrev_b32 v4, 4, v4
        v_lshrrev_b32 v6, 4, v{vLANE}
        v_lshl_add_u32 v4, v6, 7, v4
        v_bfe_u32 v6, v{vLANE}, 3, 1
        v_lshl_add_u32 v4, v6, 9, v4
        s_add_u32 s84, s84, {HBOX}
        s_add_u32 s85, s84, 4096
        s_add_u32 s90, s84, 8192
        s_branch {W4B}
        {W4}:
        """)
        self.p3_pre(3)
        a(f"{W4B}:")
        self.stamp(5)
        a(f"s_barrier\ns_cmp_eq_u32 s{sWAVE}, 4\ns_cbranch_scc1 {NOTW}")
        self.poll([f"buffer_load_dwordx3 v[{HB+4*m}:{HB+4*m+2}], v4, {WS}, s{(84, 85, 90)[m // 4]} offen offset:{1024*(m%4)} sc1" for m in range(12)],
                  [HB + 4 * m + 2 for m in range(12)], 42)
        self.stamp(6)
        for m in range(12):
            for hi in range(2):
                c = 112 + 4 * hi
                a(f"v_mfma_f32_16x16x16_bf16 {q4(c)}, {pr(FR+2*(2*m+hi))}, {pr(HB+4*m)}, " + ("0" if m == 0 else q4(c)))
        a(f"s_lshl_b32 s84, s{sWAVE}, 10\nv_lshlrev_b32 v4, 4, v{vLANE}\nv_add_u32 v4, s84, v4")
        for i in range(4):
            a(f"v_add_f32_dpp v{112+i}, v{116+i}, v{112+i} row_ror:8 row_mask:0xf bank_mask:0xf")
        a(f"ds_write_b128 v4, v[112:115] offset:{BIG + 49152}\n{NOTW}:\ns_waitcnt lgkmcnt(0)\ns_barrier")
        self.stamp(8)

    def skip_mask(self):
        a = self.a
        a(f"v_and_b32 v4, 7, v{vLANE}\nv_lshlrev_b32 v4, 3, v4\ns_mov_b32 s84, {IDXBOX}")
        self.poll([f"buffer_load_dwordx2 v[44:45], v4, {WS}, s84 offen sc1"], [45], 42, 4)
        a(f"""
        v_lshrrev_b32 v4, 3, v44
        v_and_b32 v6, 7, v44
        v_lshlrev_b32 v6, v6, 1
        v_cmp_eq_u32 vcc, s{sW}, v4
        v_cndmask_b32 v6, 0, v6, vcc
        v_or_b32_dpp v6, v6, v6 row_half_mirror row_mask:0xf bank_mask:0xf
        v_or_b32_dpp v6, v6, v6 quad_perm:[1,0,3,2] row_mask:0xf bank_mask:0xf
        v_or_b32_dpp v6, v6, v6 quad_perm:[2,3,0,1] row_mask:0xf bank_mask:0xf
        """)

    def p3(self):
        a = self.a
        NC, CAN = self.lab("p3_nc"), self.lab("p3_can")
        srd(a, sOUT, 26, 2621440)
        a(f"""
        s_lshl_b32 s92, s{sCLS}, 4
        s_add_u32 s92, s92, s{sWAVE}
        s_cmp_eq_u32 s92, 0x14
        s_cbranch_scc1 {CAN}
        s_cmp_eq_u32 s{sCLS}, 1
        s_cbranch_scc1 {NC}
        """)
        self.skip_mask()
        a(f"""
        v_readfirstlane_b32 s{sSKIP}, v6
        {CAN}:
        v_and_b32 v4, 7, v{vLANE}
        v_mul_u32_u24 v4, 640, v4
        s_add_u32 s84, s87, {YMAIN + 5120 + 9 * 64}
        """)
        self.poll([f"buffer_load_dword v44, v4, {WS}, s84 offen offset:12 sc1"], [44], 42, 2)
        a(f"""
        {NC}:
        v_lshlrev_b32 v4, 4, v0
        v_lshrrev_b32 v6, 2, v0
        v_lshlrev_b32 v6, 7, v6
        v_and_b32 v8, 3, v0
        v_lshl_add_u32 v6, v8, 3, v6
        s_add_u32 s84, s87, {YMAIN}
        s_add_u32 s85, s88, {YMAIN}
        s_lshr_b32 s89, s{sW}, 1
        s_mul_i32 s89, s89, 10240
        s_and_b32 s90, s{sW}, 1
        s_lshl_b32 s90, s90, 5
        s_add_u32 s89, s89, s90
        s_add_u32 s89, s89, {YEXT}
        """)
        self.stamp(9)
        self.poll([f"buffer_load_dwordx4 v[44:47], v4, {WS}, s84 offen sc1",
                   f"buffer_load_dwordx4 v[48:51], v4, {WS}, s85 offen sc1",
                   f"buffer_load_dwordx2 v[52:53], v6, {WS}, s89 offen sc1",
                   f"buffer_load_dwordx2 v[54:55], v6, {WS}, s89 offen offset:64 sc1"],
                  [47, 51, 53, 55], 42, self.nap)
        self.stamp(10)
        for r in range(8):
            d = r // 2
            ya, yb = (44 + d, 48 + d) if d < 3 else (52, 54)
            t = 56 + 2 * r
            if r % 2 == 0:
                a(f"v_lshlrev_b32 v{t}, 16, v{ya}\nv_lshlrev_b32 v{t+1}, 16, v{yb}")
            else:
                a(f"v_and_b32 v{t}, s86, v{ya}\nv_and_b32 v{t+1}, s86, v{yb}")
            L = self.lab("skip")
            a(f"""
            v_pk_fma_f32 {pr(t)}, {pr(t)}, {pr(vC+2*r)}, {pr(vX+2*r)}
            s_bitcmp1_b32 s{sSKIP}, {r}
            v_cvt_pk_bf16_f32 v{t}, v{t}, v{t+1}
            s_cbranch_scc1 {L}
            buffer_store_dword v{t}, v5, s[{sOUT}:{sOUT+3}], s{87 + r // 4} offen offset:{(r % 4) * 1280} nt
            {L}:
            """)
        self.stamp(11)

    def kernel(self):
        a = self.a
        self.prologue()
        self.kv()
        a(f"s_cmp_lg_u32 s{sCLS}, 1\ns_cbranch_scc1 L_c2")
        self.conv()
        a(f"s_branch L_p3\nL_c2:\ns_cmp_lg_u32 s{sCLS}, 2\ns_cbranch_scc1 L_c3")
        self.ffn1()
        a(f"s_branch L_p3\nL_c3:\ns_cmp_lg_u32 s{sCLS}, 3\ns_cbranch_scc1 L_c0")
        self.ffn2()
        a("s_branch L_p3\nL_c0:")
        self.p3_pre(3)
        a("L_p3:")
        self.p3()
        a("s_branch L_fin\nL_aux:")
        self.aux_stats()
        a(f"s_cmp_lg_u32 s{sCLS}, 1\ns_cbranch_scc1 L_a2")
        self.aux_conv()
        a(f"s_branch L_fin\nL_a2:\ns_cmp_lg_u32 s{sCLS}, 2\ns_cbranch_scc1 L_a3")
        self.aux_ffn1()
        a(f"s_branch L_fin\nL_a3:\ns_cmp_lg_u32 s{sCLS}, 3\ns_cbranch_scc1 L_fin")
        self.aux_ffn2()
        a("L_fin:")
        self.finish_wave()
        a("L_end:\ns_endpgm\nL_code_end:")
        lines, _ = hazard.fix(a.lines)
        return "\n".join(l for l in lines if l.strip()) + "\n"


def emit(**kw):
    return (f"; @launch grid=(256,1,1) block=(384,1,1) lds={LDS_BYTES}\n" + '.amdgcn_target "amdgcn-amd-amdhsa--gfx950"\n'
            + kernel_block(KNAME + "_kernel", Gen(**kw).kernel(), 256))


if __name__ == "__main__":
    open("fused.s", "w").write(emit())
    open("fused_st.s", "w").write(emit(stamps=True))
    open("fused_st_pl.s", "w").write(emit(stamps=True, ld=""))
    open("fused_p_xcc.s", "w").write(emit(report=99, probe="xcc"))
    open("fused_p_skew.s", "w").write(emit(report=99, probe="skew"))
    for i in (4, 6, 7, 10):
        open(f"fused_r{i}.s", "w").write(emit(report=i))
```

```python
ACC = 192
SET = [(64, 96), (128, 160)]
BBIAS = 448


def q4(b):
    return f"v[{b}:{b+3}]"


def pairs(lo, hi):
    return [(x, y) for x in range(hi + 1) for y in range(hi - x, -1, -1) if x + y >= lo]


def read_list(s, lo, hi, q):
    A, B = SET[s]
    seen, out = set(), []
    for x, y in pairs(lo, hi):
        if ("B", y) not in seen:
            seen.add(("B", y))
            out.append((("B", y), f"ds_read_b128 {q4(B+4*y)}, v229 offset:{BBIAS + 512*y - 64*q}"))
        if ("A", x) not in seen:
            seen.add(("A", x))
            out.append((("A", x), f"ds_read_b64 v[{A+4*x}:{A+4*x+1}], v228 offset:{512*x + 64*q}"))
            out.append((("A", x), f"ds_read_b64 v[{A+4*x+2}:{A+4*x+3}], v228 offset:{512*x + 64*q + 8}"))
    return out


def mfma(s, x, y):
    A, B = SET[s]
    return f"v_mfma_f32_16x16x32_bf16 {q4(ACC+4*(x+y))}, {q4(A+4*x)}, {q4(B+4*y)}, {q4(ACC+4*(x+y))}"


def schedule(stages, extras, group=6, cap=12):
    steps = [(lo, hi, q) for lo, hi in stages for q in range(8)]
    out, queue = [], []
    for t, (lo, hi, q) in enumerate(steps):
        s = t % 2
        pp = pairs(lo, hi)
        nxt = read_list(1 - s, *steps[t + 1]) if t + 1 < len(steps) else []
        fill = [((t + 1,) + f, r) for f, r in nxt]
        ex = [(None, e) for e in extras.get(t, [])]
        n = len(pp)
        slots = [[] for _ in range(n)]
        span = max(1, n - 2)
        for k, item in enumerate(fill):
            slots[k * span // len(fill)].append(item)
        for k, item in enumerate(ex):
            slots[min(n - 1, 2 + k * (n - 2) // len(ex))].append(item)
        for i, (x, y) in enumerate(pp):
            want = {(t, "A", pp[j][0]) for j in range(i, min(n, i + group))} | {(t, "B", pp[j][1]) for j in range(i, min(n, i + group))}
            now = {(t, "A", x), (t, "B", y)}
            if any(f in now for f in queue):
                last = max(k for k, f in enumerate(queue) if f in want)
                left = min(len(queue) - 1 - last, cap)
                out.append(f"s_waitcnt lgkmcnt({left})")
                queue = queue[len(queue) - left:] if left else []
            out.append(mfma(s, x, y))
            for f, ins in slots[i]:
                if ins == "s_barrier" and None in queue:
                    left = min(cap, len(queue) - 1 - max(k for k, g in enumerate(queue) if g is None))
                    out.append(f"s_waitcnt lgkmcnt({left})")
                    queue = queue[len(queue) - left:] if left else []
                out.append(ins)
                if ins.startswith("ds_"):
                    queue.append(f)
    return out
```

```python
from gen import Asm, kernel_block, KNAME
import hazard
import convloop

KV = 0x000000
YMAIN = 0x400000
YEXT = 0x700000
RBOX = 0x880000
STBOX = 0x890000
HBOX = 0x8A0000
IDXBOX = 0x8B0000
EPOCH = 0x8B1000
STAMPS = 0x900000
WS_USED = 0xA00000

HC_K = 4160
HC_S = 4 * HC_K
STAT = 0
SEL_C = 128
SEL_N = SEL_C + 80
SEL_G = 576
SKIP = 256
TOK = 272
RED = 640
BIG = 1280
XB = BIG
XS = 4576
HC0 = 19712
YS0 = HC0 + 4 * HC_S + 1024
YS = 4160
XSEL = BIG + 81920
XR = 1312
LDS_BYTES = YS0 + 4 * YS

vLANE = 1
vX, vC = 10, 26
vQ, vK, vV, vWR, vSH = 232, 50, 61, 69, 70
vST = 240
vR = 128
sQ, sKK, sVV, sOUT, sWS, sRA, sRB = 32, 36, 40, 44, 48, 52, 56
sW, sWAVE, sT, sIDX, sCLS, sSKIP = 60, 61, 62, 63, 64, 65
sST = 66
SPIN = 400000
ONES = "0x3f803f80"


def srd(a, s, lo, size):
    a(f"s_mov_b32 s{s}, s{lo}\ns_mov_b32 s{s+1}, s{lo+1}\ns_mov_b32 s{s+2}, {size}\ns_mov_b32 s{s+3}, 0x20000")


def pr(b):
    return f"v[{b}:{b+1}]"


def q4(b):
    return f"v[{b}:{b+3}]"


WS = f"s[{sWS}:{sWS+3}]"


class Gen:
    def __init__(self, stamps=False, ld="nt", hold=0, nap=1, report=None, stamp_wave=0, probe=None):
        self.probe = probe
        self.stamps, self.ld, self.nap, self.report, self.stamp_wave = stamps, ld, nap, report, stamp_wave
        self.hold = 3000 if report is not None else hold
        self.a = Asm()
        self.uid = 0

    def lab(self, base):
        self.uid += 1
        return f"L_{base}_{self.uid}"

    def stamp(self, i):
        if self.report == i:
            self.a("s_memrealtime s[96:97]\ns_waitcnt lgkmcnt(0)\ns_sub_u32 s96, s96, s98\ns_mul_i32 s101, s96, 20")
        if self.stamps:
            self.a(f"s_memrealtime s[96:97]\ns_waitcnt lgkmcnt(0)\nv_writelane_b32 v254, s96, {i}")

    def finish_wave(self):
        a = self.a
        if self.stamps:
            a(f"""
            s_memtime s[96:97]
            s_waitcnt lgkmcnt(0)
            s_sub_u32 s96, s96, s100
            v_writelane_b32 v254, s96, 12
            s_mul_i32 s96, s2, 6
            s_add_u32 s96, s96, s{sWAVE}
            s_add_u32 s96, s96, 1
            s_lshl_b32 s96, s96, 8
            s_add_u32 s96, s96, {STAMPS}
            v_lshlrev_b32 v253, 2, v{vLANE}
            buffer_store_dword v254, v253, {WS}, s96 offen
            """)
        if self.probe == "skew":
            a("v_mov_b32 v9, 0\nglobal_load_dword v8, v9, s[28:29] sc1\ns_waitcnt vmcnt(0)\nv_readfirstlane_b32 s96, v8\ns_sub_u32 s96, s96, s98\ns_mul_i32 s101, s96, 20")
        if self.hold:
            L = self.lab("hold")
            a(f"s_waitcnt vmcnt(0)\n{L}:\ns_memrealtime s[96:97]\ns_waitcnt lgkmcnt(0)\ns_sub_u32 s96, s96, s98\ns_sub_u32 s96, s96, s101\ns_cmp_lt_i32 s96, {self.hold}\ns_cbranch_scc1 {L}")

    def poll(self, loads, tags, tmp, nap=0, first=True):
        a = self.a
        L, D, C = self.lab("poll"), self.lab("polled"), self.lab("chk")
        tags = list(tags)
        a(f"s_mov_b32 s95, 0\ns_mul_i32 s83, s{sT}, {len(tags)}")
        if not first:
            a(f"s_branch {C}")
        a(f"{L}:")
        for ld in loads:
            a(ld)
        a(f"{C}:\ns_waitcnt vmcnt(0)")
        if len(tags) == 1:
            acc = tags[0]
        else:
            acc = tmp
            rest = tags[:]
            if len(rest) % 2 == 0:
                a(f"v_add_u32 v{tmp}, v{rest[0]}, v{rest[1]}")
                rest = rest[2:]
            else:
                a(f"v_add3_u32 v{tmp}, v{rest[0]}, v{rest[1]}, v{rest[2]}")
                rest = rest[3:]
            for i in range(0, len(rest), 2):
                a(f"v_add3_u32 v{tmp}, v{tmp}, v{rest[i]}, v{rest[i+1]}")
        a(f"""
        v_cmp_ne_u32 vcc, s83, v{acc}
        s_add_u32 s95, s95, 1
        s_and_b64 exec, vcc, vcc
        s_cbranch_execz {D}
        {f"s_sleep {nap}" if nap else ""}
        s_cmp_lt_u32 s95, {SPIN}
        s_cbranch_scc1 {L}
        {D}:
        s_mov_b64 exec, -1
        """)

    def rank16(self, v, cnt, tmp):
        a = self.a
        a(f"v_mov_b32 v{cnt}, 0")
        for k in range(1, 16):
            a(f"v_sub_co_u32_dpp v{tmp}, vcc, v{v}, v{v} row_ror:{k} row_mask:0xf bank_mask:0xf\nv_addc_co_u32 v{cnt}, vcc, 0, v{cnt}, vcc")

    def silu(self, xs, ts):
        for op in ("v_mul_f32 v{t}, s84, v{x}", "v_exp_f32 v{t}, v{t}", "v_add_f32 v{t}, 1.0, v{t}", "v_rcp_f32 v{t}, v{t}", "v_mul_f32 v{x}, v{x}, v{t}"):
            for x, t in zip(xs, ts):
                self.a(op.format(x=x, t=t))

    def rnd(self, regs, t):
        n = len(regs) // 2
        for i in range(n):
            self.a(f"v_cvt_pk_bf16_f32 v{t+i}, v{regs[2*i]}, v{regs[2*i+1]}")
        for i in range(n):
            self.a(f"v_lshlrev_b32 v{regs[2*i]}, 16, v{t+i}\nv_and_b32 v{regs[2*i+1]}, s86, v{t+i}")

    def xlane_sum(self, v, t, op="v_add_f32"):
        for sw in ("v_permlane32_swap_b32", "v_permlane16_swap_b32"):
            self.a(f"v_mov_b32 v{t}, v{v}\n{sw} v{v}, v{t}\n{op} v{v}, v{v}, v{t}")

    def make_tag(self):
        self.a(f"v_readfirstlane_b32 s85, v7\ns_mul_i32 s85, s85, 0x41c64e6d\ns_add_u32 s{sT}, s85, 0x3039")

    def prologue(self):
        a = self.a
        a(f"""
        s_cmp_ge_u32 s2, 256
        s_cbranch_scc1 L_end
        {"s_memrealtime s[98:99]" if self.hold else ""}
        {"s_mov_b32 s101, 0" if self.hold else ""}
        {"s_memtime s[100:101]" if self.stamps else ""}
        s_load_dwordx16 s[4:19], s[0:1], 0
        s_load_dwordx8 s[20:27], s[0:1], 64
        s_load_dwordx4 s[28:31], s[0:1], 96
        s_getpc_b64 s[82:83]
        L_pc:
        v_lshlrev_b32 v2, 7, v0
        v_min_u32 v2, L_code_end-L_pc-4, v2
        global_load_dword v3, v2, s[82:83]
        v_lshrrev_b32 v4, 6, v0
        v_and_b32 v{vLANE}, 63, v0
        v_subrev_u32 v0, 64, v0
        v_readfirstlane_b32 s{sWAVE}, v4
        v_lshlrev_b32 v5, 2, v0
        s_and_b32 s84, s2, 7
        s_lshr_b32 s85, s2, 3
        s_lshl_b32 s{sW}, s84, 5
        s_add_u32 s{sW}, s{sW}, s85
        s_mul_i32 s86, s84, 20
        s_add_u32 s{sIDX}, s86, s85
        s_mov_b32 s{sCLS}, 1
        s_mul_i32 s86, s84, 6
        s_add_u32 s86, s86, s85
        s_sub_u32 s86, s86, 20
        s_cmp_ge_u32 s85, 20
        s_cselect_b32 s{sIDX}, s86, s{sIDX}
        s_cselect_b32 s{sCLS}, 2, s{sCLS}
        s_mul_i32 s86, s84, 5
        s_add_u32 s86, s86, s85
        s_sub_u32 s86, s86, 26
        s_cmp_ge_u32 s85, 26
        s_cselect_b32 s{sIDX}, s86, s{sIDX}
        s_cselect_b32 s{sCLS}, 3, s{sCLS}
        s_cmp_ge_u32 s85, 31
        s_cselect_b32 s{sCLS}, 0, s{sCLS}
        s_mul_i32 s87, s{sW}, 10240
        s_add_u32 s88, s87, 5120
        s_sub_u32 s{sWAVE}, s{sWAVE}, 1
        v_mov_b32 v6, {EPOCH}
        s_mov_b32 s86, 0xffff0000
        """)
        if self.stamps:
            a("v_mov_b32 v254, 0")
            self.stamp(0)
        a("s_waitcnt lgkmcnt(0)")
        srd(a, sQ, 4, 2621440)
        srd(a, sWS, 30, WS_USED)
        if self.probe == "xcc":
            a("s_getreg_b32 s96, hwreg(HW_REG_XCC_ID)\ns_and_b32 s96, s96, 15\ns_and_b32 s97, s2, 7\ns_cmp_lg_u32 s96, s97\ns_cselect_b32 s101, 2000, 0")
        if self.probe == "skew":
            a("v_mov_b32 v8, s98\nv_mov_b32 v9, 0\ns_mov_b64 exec, 1\nglobal_atomic_umax v9, v8, s[28:29] sc1\ns_mov_b64 exec, -1")
        a(f"s_cmp_eq_u32 s{sWAVE}, -1\ns_cbranch_scc1 L_aux")

    def aux_stats(self):
        a = self.a
        P = 64
        a(f"""
        s_setprio 2
        buffer_load_dword v7, v6, {WS}, 0 offen sc1
        s_lshl_b32 s85, s{sW}, 3
        v_and_b32 v9, 7, v{vLANE}
        v_add_u32 v8, s85, v9
        v_lshlrev_b32 v9, 4, v9
        v_sub_u32 v104, 2047, v8
        s_mov_b32 s84, 0x3acccccd
        s_barrier
        """)
        self.select_clear()
        a(f"v_lshlrev_b32 v4, 3, v8\nv_lshlrev_b32 v6, 4, v8\ns_waitcnt vmcnt(0)")
        self.make_tag()
        a("s_barrier")
        self.stamp(1)
        for wv in range(5):
            a(f"ds_read_b128 {q4(P+4*wv)}, v9 offset:{RED + 128*wv}")
        a(f"""
        s_waitcnt lgkmcnt(3)
        v_pk_add_f32 {pr(44)}, {pr(P)}, {pr(P+4)}
        v_pk_add_f32 {pr(46)}, {pr(P+2)}, {pr(P+6)}
        s_waitcnt lgkmcnt(1)
        v_pk_add_f32 {pr(P+8)}, {pr(P+8)}, {pr(P+12)}
        v_pk_add_f32 {pr(P+10)}, {pr(P+10)}, {pr(P+14)}
        s_waitcnt lgkmcnt(0)
        v_pk_add_f32 {pr(44)}, {pr(44)}, {pr(P+16)}
        v_pk_add_f32 {pr(46)}, {pr(46)}, {pr(P+18)}
        v_pk_add_f32 {pr(44)}, {pr(44)}, {pr(P+8)}
        v_pk_add_f32 {pr(46)}, {pr(46)}, {pr(P+10)}
        v_pk_mul_f32 v[44:45], v[44:45], s[84:85] op_sel_hi:[1,0]
        v_fma_f32 v45, -v44, v44, v45
        v_max_f32 v45, 0, v45
        v_cvt_pk_bf16_f32 v48, v44, v45
        v_lshlrev_b32 v100, 16, v48
        v_and_b32 v45, s86, v48
        v_add_f32 v45, 0x3727c5ac, v45
        v_cvt_pk_bf16_f32 v48, v45, v45
        v_and_b32 v45, s86, v48
        v_sqrt_f32 v45, v45
        v_fma_f32 v46, -v100, v47, v46
        v_cvt_pk_bf16_f32 v48, v45, v45
        v_and_b32 v45, s86, v48
        v_rcp_f32 v101, v45
        v_mov_b32 v103, s{sT}
        v_mul_f32 v46, v46, v101
        v_cvt_pk_bf16_f32 v48, v46, v46
        v_and_b32 v102, s86, v48
        v_ashrrev_i32 v49, 31, v102
        v_or_b32 v49, 0x80000000, v49
        v_xor_b32 v49, v102, v49
        v_and_or_b32 v104, v49, s86, v104
        v_mov_b32 v105, s{sT}
        s_mov_b32 s84, {RBOX}
        s_mov_b32 s85, {STBOX}
        v_lshlrev_b32 v8, 4, v{vLANE}
        s_mov_b64 exec, 0xff
        buffer_store_dwordx2 v[104:105], v4, {WS}, s84 offen sc1
        buffer_store_dwordx4 v[100:103], v6, {WS}, s85 offen sc1
        ds_write_b128 v8, v[100:103] offset:{STAT}
        s_mov_b64 exec, -1
        s_setprio 0
        """)
        self.stamp(2)
        a("s_waitcnt lgkmcnt(0)\ns_barrier")

    def touch_down(self):
        a = self.a
        NO = self.lab("t_no")
        srd(a, sRA, 24, 1966080)
        a(f"""
        s_and_b32 s84, s2, 7
        s_lshr_b32 s85, s2, 3
        s_cmp_ge_u32 s85, 16
        s_cbranch_scc1 {NO}
        s_mul_i32 s91, s84, 160
        s_andn2_b32 s91, s91, 127
        s_mul_i32 s85, s85, {96 * 1280}
        s_add_u32 s91, s91, s85
        v_lshrrev_b32 v4, 1, v{vLANE}
        v_mul_u32_u24 v4, 1280, v4
        v_and_b32 v6, 1, v{vLANE}
        v_lshl_add_u32 v4, v6, 7, v4
        """)
        for i in range(3):
            a(f"buffer_load_dword v9, v4, s[{sRA}:{sRA+3}], s91 offen")
            if i < 2:
                a(f"s_add_u32 s91, s91, {32 * 1280}")
        a(f"{NO}:")

    def touch_gate_up(self):
        a = self.a
        srd(a, sRA, 20, 1966080)
        srd(a, sRB, 22, 1966080)
        a(f"""
        s_and_b32 s84, s2, 7
        s_lshr_b32 s85, s2, 3
        s_sub_u32 s85, s85, 26
        s_mul_i32 s85, s85, {128 * 3072}
        s_mul_i32 s91, s84, 384
        s_add_u32 s91, s91, s85
        s_add_u32 s91, s91, {64 * 3072}
        v_mul_u32_u24 v4, 3072, v{vLANE}
        """)
        for i in range(3):
            a(f"buffer_load_dword v9, v4, s[{sRA}:{sRA+3}], s91 offen offset:{128*i}")
            a(f"buffer_load_dword v9, v4, s[{sRB}:{sRB+3}], s91 offen offset:{128*i}")

    def select_clear(self):
        self.a(f"""
        v_lshlrev_b32 v4, 2, v{vLANE}
        v_min_u32 v4, {SEL_N - SEL_C}, v4
        v_mov_b32 v6, 0
        ds_write_b32 v4, v6 offset:{SEL_C}
        """)

    def select(self, worker, between=None):
        a = self.a
        KY = [44 + 2 * i for i in range(8)]
        W4, W4B, RK, MORE, NOMORE, DONE = (self.lab(x) for x in ("sel_w4", "sel_w4b", "sel_rank", "sel_more", "sel_nomore", "sel_done"))
        if worker:
            a(f"""
            s_cmp_eq_u32 s{sWAVE}, 4
            s_cbranch_scc1 {W4}
            v_lshlrev_b32 v4, 4, v0
            s_mov_b32 s84, {RBOX}
            s_mov_b32 s85, {RBOX + 4096}
            s_mov_b32 s90, {RBOX + 8192}
            s_mov_b32 s91, {RBOX + 12288}
            """)
            self.poll([f"buffer_load_dwordx4 {q4(44+4*k)}, v4, {WS}, s{(84, 85, 90, 91)[k]} offen sc1" for k in range(4)],
                      [k + 1 for k in KY], 42, self.nap)
            self.stamp(6)
            a(f"""
            v_max3_u32 v61, v{KY[0]}, v{KY[1]}, v{KY[2]}
            v_max3_u32 v62, v{KY[3]}, v{KY[4]}, v{KY[5]}
            v_max3_u32 v61, v61, v{KY[6]}, v{KY[7]}
            v_lshrrev_b32 v2, 4, v0
            v_max_u32 v61, v61, v62
            v_lshlrev_b32 v2, 2, v2
            v_max_u32_dpp v62, v61, v61 row_ror:8 row_mask:0xf bank_mask:0xf
            v_max_u32_dpp v62, v62, v62 row_ror:4 row_mask:0xf bank_mask:0xf
            v_max_u32_dpp v62, v62, v62 row_ror:2 row_mask:0xf bank_mask:0xf
            v_max_u32_dpp v62, v62, v62 row_ror:1 row_mask:0xf bank_mask:0xf
            s_mov_b32 s84, 0x00010001
            s_mov_b32 exec_lo, s84
            s_mov_b32 exec_hi, s84
            ds_write_b32 v2, v62 offset:{SEL_G}
            s_mov_b64 exec, -1
            {W4}:
            """)
        a(f"""
        v_and_b32 v8, 15, v{vLANE}
        v_lshlrev_b32 v8, 2, v8
        s_waitcnt lgkmcnt(0)
        s_barrier
        ds_read_b32 v60, v8 offset:{SEL_G}
        """)
        if between:
            between()
        a(f"v_mov_b32 v6, {SEL_N}\nv_mov_b32 v43, 1\ns_waitcnt lgkmcnt(0)\n{RK}:")
        if worker:
            a(f"s_cmp_eq_u32 s{sWAVE}, 4\ns_cbranch_scc1 {NOMORE}")
            self.rank16(60, 62, 63)
            a(f"""
            v_cmp_eq_u32 vcc, 8, v62
            v_mov_b32 v63, v61
            s_ff1_i32_b64 s84, vcc
            v_readlane_b32 s85, v60, s84
            {MORE}:
            v_cmp_le_u32 vcc, s85, v63
            s_and_b64 exec, vcc, vcc
            s_cbranch_execz {NOMORE}
            ds_add_rtn_u32 v62, v6, v43
            """)
            for i in range(8):
                a(f"v_cmp_lt_u32 s[{66+2*i}:{67+2*i}], v{KY[i]}, v63")
            for i in range(8):
                a(f"v_cndmask_b32 v{45+2*i}, 0, v{KY[i]}, s[{66+2*i}:{67+2*i}]")
            a(f"""
            s_waitcnt lgkmcnt(0)
            v_min_u32 v62, 16, v62
            v_lshlrev_b32 v62, 2, v62
            ds_write_b32 v62, v63 offset:{SEL_C}
            v_max3_u32 v63, v45, v47, v49
            v_max3_u32 v62, v51, v53, v55
            v_max3_u32 v63, v63, v57, v59
            v_max_u32 v63, v63, v62
            s_branch {MORE}
            {NOMORE}:
            s_mov_b64 exec, -1
            """)
        a(f"""
        s_waitcnt lgkmcnt(0)
        s_barrier
        ds_read_b32 v62, v6
        ds_read_b32 v60, v8 offset:{SEL_C}
        s_waitcnt lgkmcnt(0)
        v_readfirstlane_b32 s84, v62
        s_cmp_le_u32 s84, 16
        s_cbranch_scc1 {DONE}
        s_barrier
        """)
        self.select_clear()
        a(f"v_mov_b32 v6, {SEL_N}\ns_waitcnt lgkmcnt(0)\ns_barrier\ns_branch {RK}\n{DONE}:")
        self.stamp(7)

    def publish_y(self, first, count, vtid):
        a = self.a
        a(f"""
        v_and_b32 v8, 3, v{vtid}
        v_lshrrev_b32 v6, 2, v{vtid}
        v_add_u32 v6, {first // 4}, v6
        v_mul_u32_u24 v2, {YS}, v8
        v_lshrrev_b32 v42, 5, v6
        v_lshl_add_u32 v2, v42, 9, v2
        v_and_b32 v42, 1, v6
        v_lshl_add_u32 v2, v42, 8, v2
        v_bfe_u32 v43, v6, 1, 4
        v_lshl_add_u32 v2, v43, 4, v2
        v_add_u32 v2, {YS0}, v2
        v_mul_u32_u24 v3, 10240, v6
        v_lshl_add_u32 v3, v8, 4, v3
        v_lshrrev_b32 v6, 1, v6
        v_mul_u32_u24 v6, 10240, v6
        v_lshl_add_u32 v6, v42, 5, v6
        v_lshl_add_u32 v6, v8, 3, v6
        s_lshr_b32 s84, s{sIDX}, 1
        s_lshl_b32 s84, s84, 6
        s_and_b32 s85, s{sIDX}, 1
        s_mul_i32 s85, s85, 5120
        s_add_u32 s84, s84, s85
        s_add_u32 s84, s84, {YMAIN}
        s_lshl_b32 s85, s{sIDX}, 6
        s_add_u32 s85, s85, {YEXT}
        """)
        for k in range(count):
            a(f"v_mov_b32 v{45+2*k}, s{sT}")
        a("s_waitcnt lgkmcnt(0)\ns_barrier")
        for k in range(count):
            a(f"ds_read_b128 {q4(64+4*k)}, v2 offset:{512*k}")
        for k in range(count):
            a(f"""
            s_waitcnt lgkmcnt({count-1-k})
            v_mov_b32 v{44+2*k}, v{67+4*k}
            v_mov_b32 v{67+4*k}, s{sT}
            buffer_store_dwordx4 {q4(64+4*k)}, v3, {WS}, s84 offen sc1
            buffer_store_dwordx2 {pr(44+2*k)}, v6, {WS}, s85 offen sc1
            """)
            if k < count - 1:
                a("s_add_u32 s84, s84, 327680\ns_add_u32 s85, s85, 163840")

    def aux_conv(self):
        a = self.a
        a("s_barrier")
        self.touch_down()
        self.publish_y(0, 6, vLANE)
        self.skip_mask()
        a(f"v_mov_b32 v4, {SKIP}\nds_write_b32 v4, v6\ns_waitcnt lgkmcnt(0)\ns_barrier")

    def idx_poll(self):
        a = self.a
        a(f"v_and_b32 v4, 7, v{vLANE}\nv_lshlrev_b32 v4, 3, v4\ns_and_b32 s84, s2, 7\ns_lshl_b32 s84, s84, 7\ns_add_u32 s84, s84, {IDXBOX}")
        self.poll([f"buffer_load_dwordx2 v[44:45], v4, {WS}, s84 offen sc1"], [45], 42, 2)

    def selector(self):
        a = self.a
        NI = self.lab("noidx")
        self.select(True)
        a(f"s_cmp_lg_u32 s{sWAVE}, 0\ns_cbranch_scc1 {NI}")
        self.rank16(60, 62, 63)
        a(f"""
        v_and_b32 v4, 2047, v60
        v_sub_u32 v44, 2047, v4
        v_mov_b32 v45, s{sT}
        v_sub_u32 v62, 15, v62
        v_lshlrev_b32 v43, 3, v62
        v_cmp_gt_u32 vcc, 8, v62
        s_and_b32 s84, s2, 7
        s_lshl_b32 s85, s84, 7
        s_add_u32 s85, s85, {IDXBOX}
        s_and_b64 exec, vcc, 0xffff
        buffer_store_dwordx2 v[44:45], v43, {WS}, s85 offen sc1
        s_cmp_lg_u32 s84, 0
        s_cbranch_scc1 {NI}
        s_mov_b64 exec, 1
        v_mov_b32 v43, {EPOCH}
        buffer_store_dword v45, v43, {WS}, 0 offen sc1
        {NI}:
        s_mov_b64 exec, -1
        """)
        self.stamp(8)

    def aux_ffn1(self):
        a = self.a
        a(f"""
        v_mov_b32 v48, {ONES}
        v_lshlrev_b32 v4, 2, v{vLANE}
        v_add_u32 v4, {XSEL + 8 * XR}, v4
        ds_write_b32 v4, v48
        """)
        self.idx_poll()
        self.stamp(6)
        a(f"""
        v_lshrrev_b32 v6, 3, v{vLANE}
        v_lshlrev_b32 v4, 2, v6
        ds_bpermute_b32 v46, v4, v44
        v_lshlrev_b32 v43, 4, v44
        s_mov_b32 s89, {STBOX}
        v_and_b32 v8, 7, v{vLANE}
        v_mul_u32_u24 v2, {XR}, v6
        v_lshl_add_u32 v2, v8, 4, v2
        v_add_u32 v2, {XSEL}, v2
        s_waitcnt lgkmcnt(0)
        v_mul_u32_u24 v46, 1280, v46
        v_lshl_add_u32 v46, v8, 4, v46
        """)
        for i in range(10):
            a(f"buffer_load_dwordx4 {q4(64+4*i)}, v46, s[{sQ}:{sQ+3}], 0 offen offset:{128*i}")
        st = [f"buffer_load_dwordx4 v[48:51], v43, {WS}, s89 offen sc1"]
        a(st[0])
        a("v_lshlrev_b32 v8, 3, v8")
        for i in range(10):
            a(f"s_waitcnt vmcnt({10 - i})\nds_write_b128 v2, {q4(64+4*i)} offset:{128*i}")
        self.poll(st, [51], 42, first=False)
        a(f"ds_write_b64 v8, v[48:49] offset:{TOK}\ns_waitcnt lgkmcnt(0)")
        self.stamp(7)
        a("s_barrier\ns_barrier")

    def aux_ffn2(self):
        a = self.a
        self.touch_gate_up()
        self.idx_poll()
        self.stamp(7)
        a(f"""
        v_lshrrev_b32 v6, 4, v{vLANE}
        s_lshl_b32 s84, s{sIDX}, 5
        s_mov_b32 s89, {STBOX}
        v_mov_b32 v61, v44
        v_mul_u32_u24 v62, 1280, v61
        v_lshl_add_u32 v62, v6, 3, v62
        v_add_u32 v62, s84, v62
        buffer_load_dwordx2 v[120:121], v62, s[{sQ}:{sQ+3}], 0 offen
        v_lshlrev_b32 v43, 4, v61
        """)
        self.poll([f"buffer_load_dwordx4 v[80:83], v43, {WS}, s89 offen sc1"], [83], 44)
        srd(a, sOUT, 26, 2621440)
        a(f"""
        s_mov_b32 s84, 0xbfb8aa3b
        v_mul_f32 v42, s84, v82
        v_exp_f32 v42, v42
        v_lshlrev_b32 v116, 16, v120
        v_and_b32 v117, s86, v120
        v_add_f32 v42, 1.0, v42
        v_rcp_f32 v42, v42
        v_lshlrev_b32 v118, 16, v121
        v_and_b32 v119, s86, v121
        v_cvt_pk_bf16_f32 v42, v42, v42
        v_and_b32 v82, s86, v42
        """)
        X4 = [112, 113, 114, 115]
        U4 = [128, 129, 130, 131]
        for i in range(4):
            a(f"v_sub_f32 v{112+i}, v{116+i}, v80")
        self.rnd(X4, 42)
        for i in range(4):
            a(f"v_mul_f32 v{112+i}, v{112+i}, v81")
        self.rnd(X4, 42)
        a(f"""
        v_lshrrev_b32 v4, 3, v61
        v_mul_u32_u24 v122, 10240, v4
        v_lshl_add_u32 v122, v6, 5, v122
        s_lshl_b32 s85, s{sIDX}, 7
        s_add_u32 s85, s85, {YMAIN}
        v_add_u32 v122, s85, v122
        v_and_b32 v8, 1, v4
        v_lshrrev_b32 v4, 1, v4
        v_mul_u32_u24 v4, 10240, v4
        v_lshl_add_u32 v4, v8, 5, v4
        v_lshrrev_b32 v8, 1, v6
        v_lshl_add_u32 v4, v8, 7, v4
        v_and_b32 v8, 1, v6
        v_lshl_add_u32 v4, v8, 4, v4
        s_lshl_b32 s85, s{sIDX}, 8
        s_add_u32 s85, s85, {YEXT}
        v_add_u32 v123, s85, v4
        v_bfe_u32 v4, v61, 1, 2
        v_cmp_eq_u32 s[92:93], 1, v4
        v_cmp_eq_u32 s[66:67], 2, v4
        v_cmp_eq_u32 s[68:69], 3, v4
        v_and_b32 v4, 1, v61
        v_lshlrev_b32 v4, 4, v4
        v_sub_u32 v124, 16, v4
        v_lshlrev_b32 v4, 9, v{vLANE}
        v_add_u32 v8, 32768, v4
        v_min_u32 v8, {95 * 512}, v8
        s_mov_b32 s85, {HBOX}
        s_movk_i32 s91, 5120
        """)
        self.poll([f"buffer_load_dword v46, v4, {WS}, s85 offen offset:8 sc1",
                   f"buffer_load_dword v47, v8, {WS}, s85 offen offset:8 sc1"], [46, 47], 44, self.nap)
        self.stamp(13)
        loads = []
        for i in range(4):
            loads.append(f"buffer_load_dwordx4 {q4(160+4*i)}, v122, {WS}, {('0', 's91')[i & 1]} offen offset:{16*(i>>1)} sc1")
            loads.append(f"buffer_load_dwordx2 {pr(152+2*i)}, v123, {WS}, 0 offen offset:{64*(i&1) + 8*(i>>1)} sc1")
        a(f"s_barrier\nv_lshlrev_b32 v4, 4, v{vLANE}\ns_barrier")
        for l in loads:
            a(l)
        for wv in range(4):
            a(f"ds_read_b128 {q4(128+4*wv)}, v4 offset:{BIG + 49152 + 1024*wv}")
        a("s_waitcnt lgkmcnt(0)")
        a(f"v_pk_add_f32 {pr(128)}, {pr(128)}, {pr(132)}\nv_pk_add_f32 {pr(130)}, {pr(130)}, {pr(134)}")
        a(f"v_pk_add_f32 {pr(136)}, {pr(136)}, {pr(140)}\nv_pk_add_f32 {pr(138)}, {pr(138)}, {pr(142)}")
        a(f"v_pk_add_f32 {pr(128)}, {pr(128)}, {pr(136)}\nv_pk_add_f32 {pr(130)}, {pr(130)}, {pr(138)}")
        self.rnd(U4, 42)
        for i in range(4):
            a(f"v_mul_f32 v{128+i}, v{128+i}, v82")
        self.rnd(U4, 42)
        for i in range(4):
            a(f"v_add_f32 v{128+i}, v{128+i}, v{112+i}")
        self.rnd(U4, 42)
        self.silu(U4, [132, 133, 134, 135])
        self.rnd(U4, 42)
        self.stamp(8)
        self.poll(loads, [163 + 4 * i for i in range(4)] + [153 + 2 * i for i in range(4)], 42, 2, first=False)
        self.stamp(10)
        for i in range(4):
            a(f"v_cndmask_b32 v{160+4*i}, v{160+4*i}, v{161+4*i}, s[92:93]")
        for i in range(4):
            a(f"v_cndmask_b32 v{160+4*i}, v{160+4*i}, v{162+4*i}, s[66:67]")
        for i in range(4):
            a(f"v_cndmask_b32 v{160+4*i}, v{160+4*i}, v{152+2*i}, s[68:69]")
        for i in range(4):
            a(f"v_lshlrev_b32 v{160+4*i}, v124, v{160+4*i}\nv_and_b32 v{160+4*i}, s86, v{160+4*i}\nv_mul_f32 v{112+i}, v{112+i}, v{160+4*i}")
        self.rnd(X4, 42)
        for i in range(4):
            a(f"v_mul_f32 v{112+i}, v{112+i}, v{128+i}")
        self.rnd(X4, 42)
        for i in range(4):
            a(f"v_add_f32 v{112+i}, v{112+i}, v{116+i}")
        a(f"""
        v_cvt_pk_bf16_f32 v112, v112, v113
        v_cvt_pk_bf16_f32 v113, v114, v115
        s_mov_b32 s82, 0x00ff00ff
        s_mov_b32 exec_lo, s82
        s_mov_b32 exec_hi, s82
        buffer_store_dwordx2 v[112:113], v62, s[{sOUT}:{sOUT+3}], 0 offen nt
        s_mov_b64 exec, -1
        """)
        self.stamp(11)

    def wait_vm(self, n):
        L = self.lab("wv")
        self.a(f"s_cmp_lt_u32 s82, 4\ns_cbranch_scc1 {L}\ns_waitcnt vmcnt({n})\n{L}:\ns_waitcnt vmcnt({n + 4})")

    def conv_loads(self):
        a, ld = self.a, self.ld
        a(f"""
        s_lshr_b32 s92, s{sIDX}, 1
        s_lshl_b32 s92, s92, 3
        s_and_b32 s93, s{sIDX}, 1
        s_add_u32 s92, s92, s93
        s_lshl_b32 s93, s{sWAVE}, 1
        s_add_u32 s92, s92, s93
        s_lshl_b32 s85, s92, 12
        s_lshl_b32 s92, s92, 1
        s_and_b32 s93, s92, 2
        s_lshl_b32 s93, s93, 3
        s_andn2_b32 s92, s92, 3
        s_load_dword s94, s[14:15], s92
        """)
        srd(a, sRA, 12, 2621440)
        a(f"""
        v_lshlrev_b32 v6, 4, v{vLANE}
        v_add_u32 v6, s85, v6
        """)
        for it in range(4):
            a(f"buffer_load_dwordx4 {q4(vR+8*it+4)}, v6, s[{sRA}:{sRA+3}], 0 offen offset:{it*1024} {ld}")

    def kv(self):
        a, ld = self.a, self.ld
        KF, SH, ACC, VF, G = 74, 96, 104, 120, 42
        srd(a, sKK, 6, 2621440)
        srd(a, sVV, 8, 2621440)
        a(f"""
        s_sub_u32 s89, s87, 3840
        s_cmp_eq_u32 s{sW}, 0
        s_cselect_b32 s89, 0, s89
        s_cselect_b32 s90, 0, -1
        buffer_load_dword v7, v6, {WS}, 0 offen sc1
        global_load_dword v{vWR}, v5, s[18:19]
        """)
        for r in range(8):
            a(f"buffer_load_dword v{vQ+r}, v5, s[{sQ}:{sQ+3}], s{87 + r // 4} offen offset:{(r % 4) * 1280}")
        a(f"v_lshlrev_b32 v6, 4, v0\ns_barrier\nglobal_load_dwordx4 {q4(vSH)}, v6, s[10:11]")
        for r in range(3):
            a(f"buffer_load_dword v{vK+r}, v5, s[{sKK}:{sKK+3}], s89 offen offset:{r * 1280}")
        for r in range(8):
            a(f"buffer_load_dword v{vK+3+r}, v5, s[{sKK}:{sKK+3}], s{87 + r // 4} offen offset:{(r % 4) * 1280}")
        for r in range(8):
            a(f"buffer_load_dword v{vV+r}, v5, s[{sVV}:{sVV+3}], s{87 + r // 4} offen offset:{(r % 4) * 1280} {ld}")
        S1, S2, S3, WS_, T = 74, 82, 90, 98, 100
        a(f"""
        v_lshrrev_b32 v8, 3, v{vLANE}
        s_lshl_b32 s85, s{sWAVE}, 7
        v_lshl_add_u32 v8, v8, 4, s85
        s_mov_b32 s84, {ONES}
        s_lshl_b32 s82, s{sCLS}, 4
        s_add_u32 s82, s82, s{sWAVE}
        s_sub_u32 s82, s82, 0x10
        s_waitcnt vmcnt(28)
        v_dot2_f32_bf16 v{WS_}, v{vWR}, s84, 0
        """)
        self.make_tag()
        self.xlane_sum(WS_, WS_ + 1)
        a(f"v_add_f32_dpp v{T+3}, v{WS_}, v{WS_} row_ror:8 row_mask:0xf bank_mask:0xf\ns_waitcnt vmcnt(20)")
        self.stamp(2)
        for r in range(8):
            a(f"""
            v_dot2_f32_bf16 v{S1+r}, v{vQ+r}, s84, 0
            v_dot2_f32_bf16 v{S2+r}, v{vQ+r}, v{vQ+r}, 0
            v_dot2_f32_bf16 v{S3+r}, v{vQ+r}, v{vWR}, 0
            """)
        for sw, n in (("v_permlane32_swap_b32", 4), ("v_permlane16_swap_b32", 2)):
            for r in range(n):
                for b in (S1, S2, S3):
                    a(f"{sw} v{b+r}, v{b+r+n}")
            for r in range(n):
                for b in (S1, S2, S3):
                    a(f"v_add_f32 v{b+r}, v{b+r}, v{b+r+n}")
        for k, b in enumerate((S1, S2, S3)):
            a(f"v_add_f32_dpp v{T+k}, v{b}, v{b} row_ror:8 row_mask:0xf bank_mask:0x3")
        for k, b in enumerate((S1, S2, S3)):
            a(f"v_add_f32_dpp v{T+k}, v{b+1}, v{b+1} row_ror:8 row_mask:0xf bank_mask:0xc")
        for mod in ("row_half_mirror", "quad_perm:[1,0,3,2]", "quad_perm:[2,3,0,1]"):
            for k in (3, 0, 1, 2):
                a(f"v_add_f32_dpp v{T+k}, v{T+k}, v{T+k} {mod} row_mask:0xf bank_mask:0xf")
        NC = self.lab("noconv")
        a(f"""
        s_mov_b32 s92, 0x01010101
        s_mov_b32 exec_lo, s92
        s_mov_b32 exec_hi, s92
        ds_write_b128 v8, {q4(T)} offset:{RED}
        s_mov_b64 exec, -1
        v_lshrrev_b32 v4, 2, v0
        v_mul_u32_u24 v4, 49152, v4
        v_and_b32 v6, 3, v0
        v_lshl_add_u32 v4, v6, 4, v4
        s_lshl_b32 s84, s{sW}, 6
        s_add_u32 s91, s84, 16384
        s_add_u32 s89, s84, 32768
        s_waitcnt lgkmcnt(0)
        s_barrier
        s_cmp_ge_u32 s82, 4
        s_cbranch_scc1 {NC}
        """)
        self.conv_loads()
        a(f"{NC}:")
        self.wait_vm(19)
        for j in range(4):
            for c in range(2):
                src = vSH + 2 * c + j // 2
                a(f"v_lshlrev_b32 v{SH+2*j+c}, 16, v{src}" if j % 2 == 0 else f"v_and_b32 v{SH+2*j+c}, s86, v{src}")
        self.wait_vm(8)
        self.stamp(1)
        for r in range(3):
            a(f"v_and_b32 v{vK+r}, s90, v{vK+r}")
        for r in range(11):
            a(f"v_lshlrev_b32 v{KF+2*r}, 16, v{vK+r}\nv_and_b32 v{KF+2*r+1}, s86, v{vK+r}")
        for r in range(8):
            a(f"v_pk_mul_f32 {pr(ACC+2*r)}, {pr(KF+2*r)}, {pr(SH+6)}")
        for j in (2, 1, 0):
            for r in range(8):
                a(f"v_pk_fma_f32 {pr(ACC+2*r)}, {pr(KF+2*(r+3-j))}, {pr(SH+2*j)}, {pr(ACC+2*r)}")
        for g in (3, 7, 9, 11):
            a(f"v_mov_b32 v{G+g}, s{sT}")
        self.wait_vm(0)
        self.stamp(3)
        for r in range(8):
            a(f"v_lshlrev_b32 v{VF+2*(r%4)}, 16, v{vV+r}\nv_and_b32 v{VF+2*(r%4)+1}, s86, v{vV+r}")
            a(f"v_pk_mul_f32 {pr(ACC+2*r)}, {pr(ACC+2*r)}, {pr(VF+2*(r%4))}")
        for c in range(2):
            for d in range(4):
                dst = G + 4 * c + d if d < 3 else G + 8 + 2 * c
                a(f"v_cvt_pk_bf16_f32 v{dst}, v{ACC+2*(7-2*d)+c}, v{ACC+2*(6-2*d)+c}")
        a(f"""
        buffer_store_dwordx4 {q4(G)}, v4, {WS}, s84 offen sc1
        buffer_store_dwordx4 {q4(G+4)}, v4, {WS}, s91 offen sc1
        buffer_store_dwordx4 {q4(G+8)}, v4, {WS}, s89 offen sc1
        """)
        self.stamp(4)
        a(f"""
        v_and_b32 v6, 7, v{vLANE}
        v_lshlrev_b32 v6, 4, v6
        s_barrier
        ds_read_b64 {pr(vST)}, v6 offset:{STAT}
        """)

    def p3_pre(self):
        a = self.a
        T = 200
        for r in range(8):
            a(f"v_readlane_b32 s{sST+2*r}, v{vST}, {r}\nv_readlane_b32 s{sST+2*r+1}, v{vST+1}, {r}")
        a("s_mov_b32 s84, 0xbfb8aa3b")
        for r in range(8):
            a(f"v_lshlrev_b32 v{vX+2*r}, 16, v{vQ+r}\nv_and_b32 v{vX+2*r+1}, s86, v{vQ+r}")
        for h in range(2):
            rows = range(4 * h, 4 * h + 4)
            t = lambda r, k: T + 6 * (r % 4) + k
            steps = [
                lambda r: f"v_pk_add_f32 {pr(t(r,0))}, {pr(vX+2*r)}, s[{sST+2*r}:{sST+2*r+1}] op_sel_hi:[1,0] neg_lo:[0,1] neg_hi:[0,1]",
                lambda r: f"v_cvt_pk_bf16_f32 v{t(r,2)}, v{t(r,0)}, v{t(r,1)}",
                lambda r: f"v_lshlrev_b32 v{t(r,0)}, 16, v{t(r,2)}\nv_and_b32 v{t(r,1)}, s86, v{t(r,2)}",
                lambda r: f"v_pk_mul_f32 {pr(t(r,0))}, {pr(t(r,0))}, s[{sST+2*r}:{sST+2*r+1}] op_sel:[0,1] op_sel_hi:[1,1]",
                lambda r: f"v_cvt_pk_bf16_f32 v{t(r,2)}, v{t(r,0)}, v{t(r,1)}",
                lambda r: f"v_lshlrev_b32 v{t(r,0)}, 16, v{t(r,2)}\nv_and_b32 v{t(r,1)}, s86, v{t(r,2)}",
                lambda r: f"v_pk_mul_f32 {pr(t(r,2))}, {pr(t(r,0))}, s[84:85] op_sel_hi:[1,0]",
                lambda r: f"v_exp_f32 v{t(r,2)}, v{t(r,2)}\nv_exp_f32 v{t(r,3)}, v{t(r,3)}",
                lambda r: f"v_pk_add_f32 {pr(t(r,2))}, {pr(t(r,2))}, 1.0 op_sel_hi:[1,0]",
                lambda r: f"v_rcp_f32 v{t(r,2)}, v{t(r,2)}\nv_rcp_f32 v{t(r,3)}, v{t(r,3)}",
                lambda r: f"v_pk_mul_f32 {pr(t(r,2))}, {pr(t(r,2))}, {pr(t(r,0))}",
                lambda r: f"v_cvt_pk_bf16_f32 v{t(r,4)}, v{t(r,2)}, v{t(r,3)}",
                lambda r: f"v_lshlrev_b32 v{t(r,2)}, 16, v{t(r,4)}\nv_and_b32 v{t(r,3)}, s86, v{t(r,4)}",
                lambda r: f"v_pk_mul_f32 {pr(vC+2*r)}, {pr(t(r,0))}, {pr(t(r,2))}",
            ]
            for st in steps:
                for r in rows:
                    a(st(r))

    def conv(self):
        a = self.a
        ACC = 192
        SET = [(64, 96), (128, 160)]
        W4, FIN = self.lab("conv_w4"), self.lab("conv_fin")
        a(f"""
        s_cmp_eq_u32 s{sWAVE}, 4
        s_cbranch_scc1 {W4}
        s_mul_i32 s84, s{sWAVE}, {HC_S}
        s_add_u32 s84, s84, {HC0}
        v_lshlrev_b32 v4, 4, v{vLANE}
        v_add_u32 v4, s84, v4
        v_mov_b32 v120, 0
        v_mov_b32 v121, 0
        v_mov_b32 v122, 0
        v_mov_b32 v123, 0
        v_mov_b32 v{vR+2}, 0
        v_mov_b32 v{vR+3}, 0
        s_waitcnt vmcnt(3)
        """)
        for it in range(1, 4):
            for d in (2, 3):
                a(f"v_mov_b32_dpp v{vR+8*it+d}, v{vR+8*it-4+d} wave_ror:1 row_mask:0xf bank_mask:0xf")
        for it in range(4):
            for d in (2, 3):
                a(f"v_mov_b32_dpp v{vR+8*it+d}, v{vR+8*it+4+d} wave_shr:1 row_mask:0xf bank_mask:0xf")
        self.stamp(13)
        for it in range(4):
            W = vR + 8 * it + 4
            O = 64 + 12 * (it % 2)
            a(f"ds_write_b128 v4, {q4(W)} offset:{32 + 1024*it}")
            for d in range(4):
                a(f"v_alignbyte_b32 v{O+d}, v{W+d}, v{W+d-1}, 2")
            for d in range(4):
                a(f"v_mov_b32 v{O+4+d}, v{W+d-1}")
            for d in range(4):
                a(f"v_alignbyte_b32 v{O+8+d}, v{W+d-1}, v{W+d-2}, 2")
            for k in range(1, 4):
                a(f"ds_write_b128 v4, {q4(O+4*(k-1))} offset:{k*HC_K + 32 + 1024*it}")
        a(f"""
        s_lshr_b32 s85, s{sIDX}, 1
        s_mul_i32 s85, s85, 49152
        s_and_b32 s91, s{sIDX}, 1
        s_lshl_b32 s90, s91, 14
        s_add_u32 s90, s90, s85
        s_lshl_b32 s91, s91, 3
        s_add_u32 s85, s85, s91
        s_add_u32 s85, s85, 32768
        v_lshlrev_b32 v2, 4, v0
        v_add_u32 v3, s85, v2
        v_add_u32 v2, s90, v2
        s_movk_i32 s89, 0x1000
        s_movk_i32 s90, 0x2000
        s_movk_i32 s91, 0x3000
        """)
        so = ["0", "s89", "s90", "s91"]
        loads = []
        for k in range(4):
            loads.append(f"buffer_load_dwordx4 {q4(96+4*k)}, v2, {WS}, {so[k]} offen sc1")
            loads.append(f"buffer_load_dwordx2 {pr(112+2*k)}, v3, {WS}, {so[k]} offen sc1")
        for l in loads:
            a(l)
        a(f"""
        s_mul_i32 s85, s{sWAVE}, {XS}
        s_add_u32 s85, s85, {XB}
        v_min_u32 v4, 29, v{vLANE}
        v_lshl_add_u32 v4, v4, 4, s85
        ds_write_b128 v4, v[120:123]
        v_and_b32 v6, 7, v{vLANE}
        v_lshrrev_b32 v4, 1, v6
        v_mul_u32_u24 v4, {HC_K}, v4
        v_and_b32 v6, 1, v6
        v_lshl_add_u32 v4, v6, 4, v4
        v_add_u32 v4, s84, v4
        ds_write_b128 v4, v[120:123]
        s_waitcnt lgkmcnt(0)
        s_lshr_b32 s94, s94, s93
        s_and_b32 s94, s94, 0xffff
        v_lshrrev_b32 v6, 4, v{vLANE}
        v_and_b32 v8, 15, v{vLANE}
        v_lshlrev_b32 v4, 3, v6
        v_add_u32 v4, v4, v8
        v_sub_u32 v4, 15, v4
        v_and_b32 v42, 1, v4
        v_lshlrev_b32 v42, 4, v42
        v_lshlrev_b32 v42, v42, s94
        v_ashrrev_i32 v4, 1, v4
        """)
        for d in range(4):
            a(f"v_cmp_eq_u32 vcc, {d}, v4\nv_cndmask_b32 v{224+d}, 0, v42, vcc")
        a(f"""
        v_add_u32 v4, 1, v8
        v_sub_u32 v42, 0, v4
        v_and_b32 v42, 3, v42
        v_add_u32 v4, v4, v42
        v_lshl_add_u32 v4, v6, 3, v4
        v_mul_u32_u24 v42, {HC_K}, v42
        v_lshl_add_u32 v4, v4, 1, v42
        v_add_u32 v228, s84, v4
        v_lshlrev_b32 v4, 1, v8
        v_sub_u32 v4, v4, v6
        v_add_u32 v4, {31 - convloop.BBIAS // 16}, v4
        v_lshl_add_u32 v229, v4, 4, s85
        v_and_b32 v4, 1, v6
        v_lshlrev_b32 v4, 9, v4
        v_lshrrev_b32 v6, 1, v6
        v_lshl_add_u32 v4, v6, 8, v4
        v_lshl_add_u32 v4, v8, 4, v4
        s_mul_i32 s84, s{sWAVE}, {YS}
        s_add_u32 s84, s84, {YS0}
        v_add_u32 v230, s84, v4
        v_and_b32 v4, 3, v0
        v_mul_u32_u24 v4, {XS}, v4
        v_lshrrev_b32 v6, 2, v0
        v_lshl_add_u32 v4, v6, 4, v4
        """)
        self.stamp(5)
        self.poll(loads, [99 + 4 * k for k in range(4)] + [113 + 2 * k for k in range(4)], 42, self.nap, first=False)
        self.stamp(6)
        for k in range(4):
            a(f"v_mov_b32 v{99+4*k}, v{112+2*k}")
        for k in range(4):
            a(f"ds_write_b128 v4, {q4(96+4*k)} offset:{XB + 480 + 1024*k}")
        a("s_waitcnt lgkmcnt(0)\ns_barrier")
        self.stamp(14)

        def stage_out(tiles, base):
            out = []
            for i, n in enumerate(tiles):
                out += [f"v_cvt_pk_bf16_f32 v{base+2*i}, v{ACC+4*n}, v{ACC+4*n+1}", f"v_cvt_pk_bf16_f32 v{base+2*i+1}, v{ACC+4*n+2}, v{ACC+4*n+3}"]
            for m in range(len(tiles) // 2):
                out += [f"v_permlane16_swap_b32 v{base+4*m}, v{base+4*m+2}", f"v_permlane16_swap_b32 v{base+4*m+1}, v{base+4*m+3}"]
            for m in range(len(tiles) // 2):
                out.append(f"ds_write_b128 v230, {q4(base+4*m)} offset:{512*tiles[2*m]}")
            return out

        rd = convloop.read_list(0, 0, 7, 0)
        rb = [r for f, r in rd if f[0] == "B"]
        ra = [r for f, r in rd if f[0] == "A" and f[1] < 6]
        for r in rb + ra[:6]:
            a(r)
        a("s_waitcnt lgkmcnt(6)")
        for i, b in enumerate(range(7, -1, -1)):
            a(f"v_mfma_f32_16x16x32_bf16 {q4(ACC+4*b)}, v[224:227], {q4(96+4*b)}, 0")
            for r in ra[6 + 2 * i: 8 + 2 * i]:
                a(r)
        a("s_waitcnt lgkmcnt(0)")
        so = stage_out(range(6), 44)
        for l in convloop.schedule([(0, 5), (6, 7)], {8: so[:7], 9: so[7:14], 10: so[14:], 11: ["s_barrier"]}):
            a(l)
        self.stamp(7)
        for l in stage_out((6, 7), 56):
            a(l)
        self.publish_y(768, 1, 0)
        a(f"s_branch {FIN}\n{W4}:\ns_barrier\nv_add_u32 v4, 64, v{vLANE}")
        self.publish_y(0, 6, 4)
        a(f"s_barrier\n{FIN}:\nv_mov_b32 v8, {SKIP}\nds_read_b32 v9, v8\ns_waitcnt lgkmcnt(0)\nv_readfirstlane_b32 s{sSKIP}, v9")
        self.stamp(8)

    def ffn1(self):
        a = self.a
        FR, CS, AC, QF = 128, 192, 208, 64
        FIN = self.lab("ffn1_done")
        srd(a, sRA, 20, 1966080)
        srd(a, sRB, 22, 1966080)

        a(f"""
        v_lshrrev_b32 v6, 2, v{vLANE}
        v_mul_u32_u24 v4, 3072, v6
        v_and_b32 v6, 3, v{vLANE}
        v_lshl_add_u32 v4, v6, 4, v4
        s_lshl_b32 s91, s{sIDX}, 6
        s_mul_i32 s92, s{sWAVE}, {128 * 3072}
        s_add_u32 s91, s91, s92
        s_and_b32 s93, s{sIDX}, 1
        s_mul_i32 s92, s93, {32 * 3072}
        s_add_u32 s90, s91, s92
        s_sub_u32 s92, s91, s92
        s_add_u32 s92, s92, {32 * 3072}
        s_add_u32 s91, s91, {64 * 3072}
        s_lshl_b32 s93, s93, 11
        """)
        for i in range(8):
            so = ("s90", "s90", "s92", "s92", "s91", "s91", "s91", "s91")[i]
            a(f"buffer_load_dwordx4 {q4(vR+4*i)}, v4, s[{sRA}:{sRA+3}], {so} offen")
            a(f"buffer_load_dwordx4 {q4(vR+32+4*i)}, v4, s[{sRB}:{sRB+3}], {so} offen")
            a(f"s_add_u32 {so}, {so}, {16 * 3072}")
        a(f"""
        v_lshrrev_b32 v6, 2, v{vLANE}
        v_bfe_u32 v4, v{vLANE}, 5, 1
        v_lshlrev_b32 v4, 1, v4
        v_and_b32 v8, 3, v{vLANE}
        v_xor_b32 v4, v4, v8
        v_lshlrev_b32 v4, 4, v4
        v_lshl_add_u32 v4, v6, 6, v4
        s_lshl_b32 s84, s{sWAVE}, 14
        s_add_u32 s84, s84, {BIG}
        v_add_u32 v2, s84, v4
        v_lshrrev_b32 v6, 4, v{vLANE}
        v_bfe_u32 v4, v{vLANE}, 2, 2
        v_lshl_add_u32 v4, v6, 3, v4
        v_lshlrev_b32 v4, 6, v4
        v_lshl_add_u32 v4, v8, 3, v4
        v_and_b32 v6, 1, v6
        v_lshl_add_u32 v4, v6, 5, v4
        v_add_u32 v4, s84, v4
        v_xor_b32 v6, 32, v4
        v_add_u32 v3, s93, v2
        s_xor_b32 s93, s93, 2048
        v_add_u32 v8, s93, v2
        """)
        for i in range(8):
            base, off = (("v3", 0), ("v3", 1024), ("v8", 0), ("v8", 1024))[i] if i < 4 else ("v2", 1024 * i)
            a(f"s_waitcnt vmcnt({14 - 2*i})\nds_write_b128 {base}, {q4(vR+4*i)} offset:{off}\nds_write_b128 {base}, {q4(vR+32+4*i)} offset:{8192 + off}")
        a("s_waitcnt lgkmcnt(0)")
        fr = lambda s, m, t: FR + 16 * s + 8 * m + 4 * t
        for s in range(4):
            for m in range(2):
                for t in range(2):
                    for hh in range(2):
                        a(f"ds_read_b64_tr_b16 {pr(fr(s,m,t)+2*hh)}, v{(4,6)[t]} offset:{8192*m + 2048*s + 256*hh}")
            a("s_waitcnt lgkmcnt(0)" if s % 2 else "s_waitcnt lgkmcnt(7)")
        a(f"""
        v_and_b32 v8, 15, v{vLANE}
        v_lshrrev_b32 v6, 4, v{vLANE}
        v_mul_u32_u24 v4, {XR}, v8
        s_lshl_b32 s84, s{sWAVE}, 8
        v_add_u32 v4, s84, v4
        v_min_u32 v4, {8 * XR}, v4
        v_lshl_add_u32 v4, v6, 4, v4
        v_add_u32 v4, {XSEL}, v4
        """)
        self.stamp(5)
        a("s_barrier")
        for s in range(4):
            a(f"ds_read_b128 {q4(QF+4*s)}, v4 offset:{64*s}")
        a("s_waitcnt lgkmcnt(0)")
        self.stamp(13)
        for s in range(4):
            for m in range(2):
                for t in range(2):
                    c = AC + 8 * m + 4 * t
                    a(f"v_mfma_f32_16x16x32_bf16 {q4(c)}, {q4(fr(s,m,t))}, {q4(QF+4*s)}, " + ("0" if s == 0 else q4(c)))
        a(f"""
        s_lshl_b32 s84, s{sWAVE}, 14
        s_add_u32 s84, s84, {BIG}
        v_lshlrev_b32 v4, 4, v{vLANE}
        v_add_u32 v4, s84, v4
        """)
        for q in range(4):
            a(f"ds_write_b128 v4, {q4(AC+4*q)} offset:{1024*q}")
        a(f"""
        v_lshlrev_b32 v4, 4, v8
        v_lshl_add_u32 v4, v6, 7, v4
        v_and_b32 v8, 7, v8
        v_lshlrev_b32 v8, 3, v8
        s_lshl_b32 s85, s{sIDX}, 1
        s_add_u32 s85, s85, s{sWAVE}
        s_lshl_b32 s85, s85, 9
        s_add_u32 s85, s85, {HBOX}
        s_lshl_b32 s84, s{sWAVE}, 10
        s_add_u32 s84, s84, {BIG}
        ds_read_b64 v[84:85], v8 offset:{TOK}
        v_lshlrev_b32 v2, 4, v{vLANE}
        v_add_u32 v2, s84, v2
        v_mov_b32 v46, s{sT}
        v_mov_b32 v47, s{sT}
        s_waitcnt lgkmcnt(0)
        s_barrier
        s_cmp_ge_u32 s{sWAVE}, 2
        s_cbranch_scc1 {FIN}
        v_sub_f32 v84, 0, v84
        v_add_u32 v3, 49152, v2
        s_mov_b32 s84, 0xbfb8aa3b
        """)
        for wv in range(5):
            base, off = ("v2", 16384 * wv) if wv < 3 else ("v3", 16384 * (wv - 3))
            a(f"ds_read_b128 {q4(128+8*wv)}, {base} offset:{off}\nds_read_b128 {q4(132+8*wv)}, {base} offset:{off+2048}")
        a("s_waitcnt lgkmcnt(6)")
        for i in range(0, 8, 2):
            a(f"v_pk_add_f32 {pr(128+i)}, {pr(128+i)}, {pr(136+i)}")
        a("s_waitcnt lgkmcnt(2)")
        for i in range(0, 8, 2):
            a(f"v_pk_add_f32 {pr(144+i)}, {pr(144+i)}, {pr(152+i)}")
        for i in range(0, 8, 2):
            a(f"v_pk_add_f32 {pr(128+i)}, {pr(128+i)}, {pr(144+i)}")
        a("s_waitcnt lgkmcnt(0)")
        for i in range(0, 8, 2):
            a(f"v_pk_add_f32 {pr(128+i)}, {pr(128+i)}, {pr(160+i)}")
        for i in range(8):
            a(f"v_fmac_f32_dpp v{128+i}, v{128+i}, v84 row_ror:8 row_mask:0xf bank_mask:0xf")
        for i in range(0, 8, 2):
            a(f"v_pk_mul_f32 {pr(128+i)}, {pr(128+i)}, v[84:85] op_sel:[0,1] op_sel_hi:[1,1]")
        self.rnd(list(range(128, 136)), 140)
        self.silu([128, 129, 130, 131], [136, 137, 138, 139])
        self.rnd([128, 129, 130, 131], 140)
        a(f"""
        v_pk_mul_f32 {pr(128)}, {pr(128)}, {pr(132)}
        v_pk_mul_f32 {pr(130)}, {pr(130)}, {pr(134)}
        s_mov_b32 s82, 0x00ff00ff
        v_cvt_pk_bf16_f32 v44, v128, v129
        v_cvt_pk_bf16_f32 v45, v130, v131
        s_mov_b32 exec_lo, s82
        s_mov_b32 exec_hi, s82
        buffer_store_dwordx4 v[44:47], v4, {WS}, s85 offen sc1
        s_mov_b64 exec, -1
        {FIN}:
        """)
        self.stamp(8)

    def ffn2(self):
        a = self.a
        FR, HB = 176, 64
        W4, W4B, NOTW = self.lab("ffn2_w4"), self.lab("ffn2_w4b"), self.lab("ffn2_notw")
        a(f"s_cmp_eq_u32 s{sWAVE}, 4\ns_cbranch_scc1 {W4}")
        srd(a, sRA, 24, 1966080)
        a(f"""
        v_lshrrev_b32 v6, 1, v{vLANE}
        v_mul_u32_u24 v6, 1280, v6
        v_and_b32 v8, 1, v{vLANE}
        v_lshl_add_u32 v6, v8, 4, v6
        s_lshl_b32 s91, s{sIDX}, 5
        s_mul_i32 s92, s{sWAVE}, {384 * 1280}
        s_add_u32 s91, s91, s92
        """)
        for i in range(12):
            a(f"buffer_load_dwordx4 {q4(vR+4*i)}, v6, s[{sRA}:{sRA+3}], s91 offen")
            if i < 11:
                a(f"s_add_u32 s91, s91, {32 * 1280}")
        a(f"""
        s_mul_i32 s84, s{sWAVE}, 12288
        s_add_u32 s85, s84, {BIG}
        v_lshlrev_b32 v4, 4, v{vLANE}
        v_add_u32 v4, s85, v4
        v_lshlrev_b32 v2, 3, v{vLANE}
        v_add_u32 v2, s85, v2
        """)
        for i in range(12):
            a(f"s_waitcnt vmcnt({11 - i})\nds_write_b128 v4, {q4(vR+4*i)} offset:{1024*i}")
        a("s_waitcnt lgkmcnt(0)")
        for n in range(24):
            a(f"ds_read_b64_tr_b16 {pr(FR+2*n)}, v2 offset:{512*n}")
            if n % 12 == 11:
                a("s_waitcnt lgkmcnt(0)")
        a(f"""
        v_and_b32 v4, 7, v{vLANE}
        v_lshlrev_b32 v4, 4, v4
        v_lshrrev_b32 v6, 4, v{vLANE}
        v_lshl_add_u32 v4, v6, 7, v4
        v_bfe_u32 v6, v{vLANE}, 3, 1
        v_lshl_add_u32 v4, v6, 9, v4
        v_mov_b32 v2, v4
        {W4}:
        """)
        self.skip_mask()
        a(f"v_readfirstlane_b32 s{sSKIP}, v6\ns_mul_i32 s84, s{sWAVE}, 12288\ns_add_u32 s84, s84, {HBOX}\ns_add_u32 s85, s84, 4096\ns_add_u32 s90, s84, 8192")
        self.stamp(5)
        a(f"s_barrier\ns_cmp_eq_u32 s{sWAVE}, 4\ns_cbranch_scc1 {NOTW}")
        self.poll([f"buffer_load_dwordx3 v[{HB+4*m}:{HB+4*m+2}], v2, {WS}, s{(84, 85, 90)[m // 4]} offen offset:{1024*(m%4)} sc1" for m in range(12)],
                  [HB + 4 * m + 2 for m in range(12)], 42)
        self.stamp(6)
        for m in range(12):
            for hi in range(2):
                c = 112 + 4 * hi
                a(f"v_mfma_f32_16x16x16_bf16 {q4(c)}, {pr(FR+2*(2*m+hi))}, {pr(HB+4*m)}, " + ("0" if m == 0 else q4(c)))
        a(f"s_lshl_b32 s84, s{sWAVE}, 10\nv_lshlrev_b32 v4, 4, v{vLANE}\nv_add_u32 v4, s84, v4")
        for i in range(4):
            a(f"v_add_f32_dpp v{112+i}, v{116+i}, v{112+i} row_ror:8 row_mask:0xf bank_mask:0xf")
        a(f"ds_write_b128 v4, v[112:115] offset:{BIG + 49152}\n{NOTW}:\ns_waitcnt lgkmcnt(0)\ns_barrier")
        self.stamp(8)

    def skip_mask(self):
        a = self.a
        self.idx_poll()
        a(f"""
        v_lshrrev_b32 v4, 3, v44
        v_and_b32 v6, 7, v44
        v_lshlrev_b32 v6, v6, 1
        v_cmp_eq_u32 vcc, s{sW}, v4
        v_cndmask_b32 v6, 0, v6, vcc
        v_or_b32_dpp v6, v6, v6 row_half_mirror row_mask:0xf bank_mask:0xf
        v_or_b32_dpp v6, v6, v6 quad_perm:[1,0,3,2] row_mask:0xf bank_mask:0xf
        v_or_b32_dpp v6, v6, v6 quad_perm:[2,3,0,1] row_mask:0xf bank_mask:0xf
        """)

    def p3(self):
        a = self.a
        NC, CAN = self.lab("p3_nc"), self.lab("p3_can")
        srd(a, sOUT, 26, 2621440)
        self.p3_pre()
        a(f"""
        s_lshl_b32 s92, s{sCLS}, 4
        s_add_u32 s92, s92, s{sWAVE}
        s_cmp_eq_u32 s92, 0x14
        s_cbranch_scc1 {CAN}
        s_bitcmp1_b32 s{sCLS}, 0
        s_cbranch_scc1 {NC}
        """)
        self.skip_mask()
        a(f"""
        v_readfirstlane_b32 s{sSKIP}, v6
        {CAN}:
        v_and_b32 v4, 7, v{vLANE}
        v_mul_u32_u24 v4, 640, v4
        s_add_u32 s84, s87, {YMAIN + 5120 + 9 * 64}
        """)
        self.poll([f"buffer_load_dword v44, v4, {WS}, s84 offen offset:12 sc1"], [44], 42, 2)
        a(f"""
        {NC}:
        v_lshlrev_b32 v4, 4, v0
        v_lshrrev_b32 v6, 2, v0
        v_lshlrev_b32 v6, 7, v6
        v_and_b32 v8, 3, v0
        v_lshl_add_u32 v6, v8, 3, v6
        s_add_u32 s84, s87, {YMAIN}
        s_add_u32 s85, s88, {YMAIN}
        s_lshr_b32 s89, s{sW}, 1
        s_mul_i32 s89, s89, 10240
        s_and_b32 s90, s{sW}, 1
        s_lshl_b32 s90, s90, 5
        s_add_u32 s89, s89, s90
        s_add_u32 s89, s89, {YEXT}
        """)
        self.stamp(9)
        self.poll([f"buffer_load_dwordx4 v[44:47], v4, {WS}, s84 offen sc1",
                   f"buffer_load_dwordx4 v[48:51], v4, {WS}, s85 offen sc1",
                   f"buffer_load_dwordx2 v[52:53], v6, {WS}, s89 offen sc1",
                   f"buffer_load_dwordx2 v[54:55], v6, {WS}, s89 offen offset:64 sc1"],
                  [47, 51, 53, 55], 42, self.nap)
        self.stamp(10)
        for r in range(8):
            d = r // 2
            ya, yb = (44 + d, 48 + d) if d < 3 else (52, 54)
            t = 56 + 2 * r
            if r % 2 == 0:
                a(f"v_lshlrev_b32 v{t}, 16, v{ya}\nv_lshlrev_b32 v{t+1}, 16, v{yb}")
            else:
                a(f"v_and_b32 v{t}, s86, v{ya}\nv_and_b32 v{t+1}, s86, v{yb}")
            L = self.lab("skip")
            a(f"""
            v_pk_fma_f32 {pr(t)}, {pr(t)}, {pr(vC+2*r)}, {pr(vX+2*r)}
            s_bitcmp1_b32 s{sSKIP}, {r}
            v_cvt_pk_bf16_f32 v{t}, v{t}, v{t+1}
            s_cbranch_scc1 {L}
            buffer_store_dword v{t}, v5, s[{sOUT}:{sOUT+3}], s{87 + r // 4} offen offset:{(r % 4) * 1280} nt
            {L}:
            """)
        self.stamp(11)

    def kernel(self):
        a = self.a
        self.prologue()
        self.kv()
        a(f"s_cmp_lg_u32 s{sCLS}, 1\ns_cbranch_scc1 L_c2")
        self.conv()
        a(f"s_branch L_p3\nL_c2:\ns_cmp_lg_u32 s{sCLS}, 2\ns_cbranch_scc1 L_c3")
        self.ffn1()
        a(f"s_branch L_p3\nL_c3:\ns_cmp_lg_u32 s{sCLS}, 3\ns_cbranch_scc1 L_c0")
        self.ffn2()
        a("s_branch L_p3\nL_c0:")
        self.selector()
        a("L_p3:")
        self.p3()
        a("s_branch L_fin\nL_aux:")
        self.aux_stats()
        a(f"s_cmp_lg_u32 s{sCLS}, 1\ns_cbranch_scc1 L_a2")
        self.aux_conv()
        a(f"s_branch L_fin\nL_a2:\ns_cmp_lg_u32 s{sCLS}, 2\ns_cbranch_scc1 L_a3")
        self.aux_ffn1()
        a(f"s_branch L_fin\nL_a3:\ns_cmp_lg_u32 s{sCLS}, 3\ns_cbranch_scc1 L_a0")
        self.aux_ffn2()
        a("s_branch L_fin\nL_a0:")
        self.select(False)
        a("L_fin:")
        self.finish_wave()
        a("L_end:\ns_endpgm\nL_code_end:")
        lines, _ = hazard.fix(a.lines)
        return "\n".join(l for l in lines if l.strip()) + "\n"


def emit(**kw):
    return (f"; @launch grid=(256,1,1) block=(384,1,1) lds={LDS_BYTES}\n" + '.amdgcn_target "amdgcn-amd-amdhsa--gfx950"\n'
            + kernel_block(KNAME + "_kernel", Gen(**kw).kernel(), 256))


if __name__ == "__main__":
    open("fused.s", "w").write(emit())
    open("fused_st.s", "w").write(emit(stamps=True))
    open("fused_st_pl.s", "w").write(emit(stamps=True, ld=""))
```

```python
from gen import Asm, kernel_block, KNAME
import hazard
import convloop

KV = 0x000000
YMAIN = 0x400000
YEXT = 0x700000
RBOX = 0x880000
STBOX = 0x890000
HBOX = 0x8A0000
IDXBOX = 0x8B0000
EPOCH = 0x8B1000
STAMPS = 0x900000
WS_USED = 0xA00000

HC_K = 4160
HC_S = 4 * HC_K
STAT = 0
SEL_C = 128
SEL_N = SEL_C + 80
SEL_G = 576
SKIP = 256
TOK = 272
RED = 640
BIG = 1280
XB = BIG
XS = 4576
HC0 = 19712
YS0 = HC0 + 4 * HC_S + 1024
YS = 4160
XSEL = BIG + 81920
XR = 1312
LDS_BYTES = YS0 + 4 * YS

vLANE = 1
vX, vC = 10, 26
vQ, vK, vV, vWR, vSH = 232, 50, 61, 69, 70
vST = 240
vR = 128
sQ, sKK, sVV, sOUT, sWS, sRA, sRB = 32, 36, 40, 44, 48, 52, 56
sW, sWAVE, sT, sIDX, sCLS, sSKIP = 60, 61, 62, 63, 64, 65
sST = 66
SPIN = 400000
ONES = "0x3f803f80"


def srd(a, s, lo, size):
    a(f"s_mov_b32 s{s}, s{lo}\ns_mov_b32 s{s+1}, s{lo+1}\ns_mov_b32 s{s+2}, {size}\ns_mov_b32 s{s+3}, 0x20000")


def pr(b):
    return f"v[{b}:{b+1}]"


def q4(b):
    return f"v[{b}:{b+3}]"


WS = f"s[{sWS}:{sWS+3}]"


class Gen:
    def __init__(self, stamps=False, ld="nt", hold=0, nap=1, report=None, stamp_wave=0, probe=None, gather_at=2, w_early=1, h_direct=1):
        self.w_early, self.h_direct = w_early, h_direct
        self.gather_at = gather_at
        self.probe = probe
        self.stamps, self.ld, self.nap, self.report, self.stamp_wave = stamps, ld, nap, report, stamp_wave
        self.hold = 3000 if report is not None else hold
        self.a = Asm()
        self.uid = 0

    def lab(self, base):
        self.uid += 1
        return f"L_{base}_{self.uid}"

    def stamp(self, i):
        if self.report == i:
            self.a("s_memrealtime s[96:97]\ns_waitcnt lgkmcnt(0)\ns_sub_u32 s96, s96, s98\ns_mul_i32 s101, s96, 20")
        if self.stamps:
            self.a(f"s_memrealtime s[96:97]\ns_waitcnt lgkmcnt(0)\nv_writelane_b32 v254, s96, {i}")

    def finish_wave(self):
        a = self.a
        if self.stamps:
            a(f"""
            s_memtime s[96:97]
            s_waitcnt lgkmcnt(0)
            s_sub_u32 s96, s96, s100
            v_writelane_b32 v254, s96, 12
            s_mul_i32 s96, s2, 6
            s_add_u32 s96, s96, s{sWAVE}
            s_add_u32 s96, s96, 1
            s_lshl_b32 s96, s96, 8
            s_add_u32 s96, s96, {STAMPS}
            v_lshlrev_b32 v253, 2, v{vLANE}
            buffer_store_dword v254, v253, {WS}, s96 offen
            """)
        if self.probe == "skew":
            a("v_mov_b32 v9, 0\nglobal_load_dword v8, v9, s[28:29] sc1\ns_waitcnt vmcnt(0)\nv_readfirstlane_b32 s96, v8\ns_sub_u32 s96, s96, s98\ns_mul_i32 s101, s96, 20")
        if self.hold:
            L = self.lab("hold")
            a(f"s_waitcnt vmcnt(0)\n{L}:\ns_memrealtime s[96:97]\ns_waitcnt lgkmcnt(0)\ns_sub_u32 s96, s96, s98\ns_sub_u32 s96, s96, s101\ns_cmp_lt_i32 s96, {self.hold}\ns_cbranch_scc1 {L}")

    def poll(self, loads, tags, tmp, nap=0, first=True):
        a = self.a
        L, D, C = self.lab("poll"), self.lab("polled"), self.lab("chk")
        tags = list(tags)
        a(f"s_mov_b32 s95, 0\ns_mul_i32 s83, s{sT}, {len(tags)}")
        if not first:
            a(f"s_branch {C}")
        a(f"{L}:")
        for ld in loads:
            a(ld)
        a(f"{C}:\ns_waitcnt vmcnt(0)")
        if len(tags) == 1:
            acc = tags[0]
        else:
            acc = tmp
            rest = tags[:]
            if len(rest) % 2 == 0:
                a(f"v_add_u32 v{tmp}, v{rest[0]}, v{rest[1]}")
                rest = rest[2:]
            else:
                a(f"v_add3_u32 v{tmp}, v{rest[0]}, v{rest[1]}, v{rest[2]}")
                rest = rest[3:]
            for i in range(0, len(rest), 2):
                a(f"v_add3_u32 v{tmp}, v{tmp}, v{rest[i]}, v{rest[i+1]}")
        a(f"""
        v_cmp_ne_u32 vcc, s83, v{acc}
        s_add_u32 s95, s95, 1
        s_and_b64 exec, vcc, vcc
        s_cbranch_execz {D}
        {f"s_sleep {nap}" if nap else ""}
        s_cmp_lt_u32 s95, {SPIN}
        s_cbranch_scc1 {L}
        {D}:
        s_mov_b64 exec, -1
        """)

    def rank16(self, v, cnt, tmp):
        a = self.a
        a(f"v_mov_b32 v{cnt}, 0")
        for k in range(1, 16):
            a(f"v_sub_co_u32_dpp v{tmp}, vcc, v{v}, v{v} row_ror:{k} row_mask:0xf bank_mask:0xf\nv_addc_co_u32 v{cnt}, vcc, 0, v{cnt}, vcc")

    def silu(self, xs, ts):
        for op in ("v_mul_f32 v{t}, s84, v{x}", "v_exp_f32 v{t}, v{t}", "v_add_f32 v{t}, 1.0, v{t}", "v_rcp_f32 v{t}, v{t}", "v_mul_f32 v{x}, v{x}, v{t}"):
            for x, t in zip(xs, ts):
                self.a(op.format(x=x, t=t))

    def rnd(self, regs, t):
        n = len(regs) // 2
        for i in range(n):
            self.a(f"v_cvt_pk_bf16_f32 v{t+i}, v{regs[2*i]}, v{regs[2*i+1]}")
        for i in range(n):
            self.a(f"v_lshlrev_b32 v{regs[2*i]}, 16, v{t+i}\nv_and_b32 v{regs[2*i+1]}, s86, v{t+i}")

    def xlane_sum(self, v, t, op="v_add_f32"):
        for sw in ("v_permlane32_swap_b32", "v_permlane16_swap_b32"):
            self.a(f"v_mov_b32 v{t}, v{v}\n{sw} v{v}, v{t}\n{op} v{v}, v{v}, v{t}")

    def make_tag(self):
        self.a(f"v_readfirstlane_b32 s85, v7\ns_mul_i32 s85, s85, 0x41c64e6d\ns_add_u32 s{sT}, s85, 0x3039")

    def prologue(self):
        a = self.a
        a(f"""
        s_cmp_ge_u32 s2, 256
        s_cbranch_scc1 L_end
        {"s_memrealtime s[98:99]" if self.hold else ""}
        {"s_mov_b32 s101, 0" if self.hold else ""}
        {"s_memtime s[100:101]" if self.stamps else ""}
        s_load_dwordx16 s[4:19], s[0:1], 0
        s_load_dwordx8 s[20:27], s[0:1], 64
        s_load_dwordx4 s[28:31], s[0:1], 96
        s_getpc_b64 s[82:83]
        L_pc:
        v_lshlrev_b32 v2, 7, v0
        v_min_u32 v2, L_code_end-L_pc-4, v2
        global_load_dword v3, v2, s[82:83]
        v_lshrrev_b32 v4, 6, v0
        v_and_b32 v{vLANE}, 63, v0
        v_subrev_u32 v0, 64, v0
        v_readfirstlane_b32 s{sWAVE}, v4
        v_lshlrev_b32 v5, 2, v0
        s_and_b32 s84, s2, 7
        s_lshr_b32 s85, s2, 3
        s_lshl_b32 s{sW}, s84, 5
        s_add_u32 s{sW}, s{sW}, s85
        s_mul_i32 s86, s84, 20
        s_add_u32 s{sIDX}, s86, s85
        s_mov_b32 s{sCLS}, 1
        s_mul_i32 s86, s84, 6
        s_add_u32 s86, s86, s85
        s_sub_u32 s86, s86, 20
        s_cmp_ge_u32 s85, 20
        s_cselect_b32 s{sIDX}, s86, s{sIDX}
        s_cselect_b32 s{sCLS}, 2, s{sCLS}
        s_mul_i32 s86, s84, 5
        s_add_u32 s86, s86, s85
        s_sub_u32 s86, s86, 26
        s_cmp_ge_u32 s85, 26
        s_cselect_b32 s{sIDX}, s86, s{sIDX}
        s_cselect_b32 s{sCLS}, 3, s{sCLS}
        s_cmp_ge_u32 s85, 31
        s_cselect_b32 s{sCLS}, 0, s{sCLS}
        s_mul_i32 s87, s{sW}, 10240
        s_add_u32 s88, s87, 5120
        s_sub_u32 s{sWAVE}, s{sWAVE}, 1
        v_mov_b32 v6, {EPOCH}
        s_mov_b32 s86, 0xffff0000
        """)
        if self.stamps:
            a("v_mov_b32 v254, 0")
            self.stamp(0)
        a("s_waitcnt lgkmcnt(0)")
        srd(a, sQ, 4, 2621440)
        srd(a, sWS, 30, WS_USED)
        if self.probe == "xcc":
            a("s_getreg_b32 s96, hwreg(HW_REG_XCC_ID)\ns_and_b32 s96, s96, 15\ns_and_b32 s97, s2, 7\ns_cmp_lg_u32 s96, s97\ns_cselect_b32 s101, 2000, 0")
        if self.probe == "skew":
            a("v_mov_b32 v8, s98\nv_mov_b32 v9, 0\ns_mov_b64 exec, 1\nglobal_atomic_umax v9, v8, s[28:29] sc1\ns_mov_b64 exec, -1")
        a(f"s_cmp_eq_u32 s{sWAVE}, -1\ns_cbranch_scc1 L_aux")

    def aux_stats(self):
        a = self.a
        P = 64
        a(f"""
        s_setprio 2
        buffer_load_dword v7, v6, {WS}, 0 offen sc1
        s_lshl_b32 s85, s{sW}, 3
        v_and_b32 v9, 7, v{vLANE}
        v_add_u32 v8, s85, v9
        v_lshlrev_b32 v9, 4, v9
        v_sub_u32 v104, 2047, v8
        s_mov_b32 s84, 0x3acccccd
        s_barrier
        """)
        self.select_clear()
        a(f"v_lshlrev_b32 v4, 3, v8\nv_lshlrev_b32 v6, 4, v8\ns_waitcnt vmcnt(0)")
        self.make_tag()
        a("s_barrier")
        self.stamp(1)
        for wv in range(5):
            a(f"ds_read_b128 {q4(P+4*wv)}, v9 offset:{RED + 128*wv}")
        a(f"""
        s_waitcnt lgkmcnt(3)
        v_pk_add_f32 {pr(44)}, {pr(P)}, {pr(P+4)}
        v_pk_add_f32 {pr(46)}, {pr(P+2)}, {pr(P+6)}
        s_waitcnt lgkmcnt(1)
        v_pk_add_f32 {pr(P+8)}, {pr(P+8)}, {pr(P+12)}
        v_pk_add_f32 {pr(P+10)}, {pr(P+10)}, {pr(P+14)}
        s_waitcnt lgkmcnt(0)
        v_pk_add_f32 {pr(44)}, {pr(44)}, {pr(P+16)}
        v_pk_add_f32 {pr(46)}, {pr(46)}, {pr(P+18)}
        v_pk_add_f32 {pr(44)}, {pr(44)}, {pr(P+8)}
        v_pk_add_f32 {pr(46)}, {pr(46)}, {pr(P+10)}
        v_pk_mul_f32 v[44:45], v[44:45], s[84:85] op_sel_hi:[1,0]
        v_fma_f32 v45, -v44, v44, v45
        v_max_f32 v45, 0, v45
        v_cvt_pk_bf16_f32 v48, v44, v45
        v_lshlrev_b32 v100, 16, v48
        v_and_b32 v45, s86, v48
        v_add_f32 v45, 0x3727c5ac, v45
        v_cvt_pk_bf16_f32 v48, v45, v45
        v_and_b32 v45, s86, v48
        v_sqrt_f32 v45, v45
        v_fma_f32 v46, -v100, v47, v46
        v_cvt_pk_bf16_f32 v48, v45, v45
        v_and_b32 v45, s86, v48
        v_rcp_f32 v101, v45
        v_mov_b32 v103, s{sT}
        v_mul_f32 v46, v46, v101
        v_cvt_pk_bf16_f32 v48, v46, v46
        v_and_b32 v102, s86, v48
        v_ashrrev_i32 v49, 31, v102
        v_or_b32 v49, 0x80000000, v49
        v_xor_b32 v49, v102, v49
        v_and_or_b32 v104, v49, s86, v104
        v_mov_b32 v105, s{sT}
        s_mov_b32 s84, {RBOX}
        s_mov_b32 s85, {STBOX}
        v_lshlrev_b32 v8, 4, v{vLANE}
        s_mov_b64 exec, 0xff
        buffer_store_dwordx2 v[104:105], v4, {WS}, s84 offen sc1
        buffer_store_dwordx4 v[100:103], v6, {WS}, s85 offen sc1
        ds_write_b128 v8, v[100:103] offset:{STAT}
        s_mov_b64 exec, -1
        s_setprio 0
        """)
        self.stamp(2)
        a("s_waitcnt lgkmcnt(0)\ns_barrier")

    def touch_down(self):
        a = self.a
        NO = self.lab("t_no")
        srd(a, sRA, 24, 1966080)
        a(f"""
        s_and_b32 s84, s2, 7
        s_lshr_b32 s85, s2, 3
        s_cmp_ge_u32 s85, 16
        s_cbranch_scc1 {NO}
        s_mul_i32 s91, s84, 160
        s_andn2_b32 s91, s91, 127
        s_mul_i32 s85, s85, {96 * 1280}
        s_add_u32 s91, s91, s85
        v_lshrrev_b32 v4, 1, v{vLANE}
        v_mul_u32_u24 v4, 1280, v4
        v_and_b32 v6, 1, v{vLANE}
        v_lshl_add_u32 v4, v6, 7, v4
        """)
        for i in range(3):
            a(f"buffer_load_dword v9, v4, s[{sRA}:{sRA+3}], s91 offen")
            if i < 2:
                a(f"s_add_u32 s91, s91, {32 * 1280}")
        a(f"{NO}:")

    def touch_gate_up(self):
        a = self.a
        a(f"""
        s_and_b32 s84, s2, 7
        s_lshr_b32 s85, s2, 3
        s_mov_b32 s{sRA+2}, 1966080
        s_mov_b32 s{sRA+3}, 0x20000
        s_cmp_ge_u32 s85, 10
        s_cselect_b32 s{sRA}, s22, s20
        s_cselect_b32 s{sRA+1}, s23, s21
        s_cselect_b32 s91, 10, 0
        s_sub_u32 s85, s85, s91
        s_mul_i32 s91, s84, 384
        s_mul_i32 s85, s85, {64 * 3072}
        s_add_u32 s91, s91, s85
        v_mul_u32_u24 v4, 3072, v{vLANE}
        """)
        for i in range(3):
            a(f"buffer_load_dword v9, v4, s[{sRA}:{sRA+3}], s91 offen offset:{128*i}")

    def select_clear(self):
        self.a(f"""
        v_lshlrev_b32 v4, 2, v{vLANE}
        v_min_u32 v4, {SEL_N - SEL_C}, v4
        v_mov_b32 v6, 0
        ds_write_b32 v4, v6 offset:{SEL_C}
        """)

    def select(self, worker, between=None):
        a = self.a
        KY = [44 + 2 * i for i in range(8)]
        W4, W4B, RK, MORE, NOMORE, DONE = (self.lab(x) for x in ("sel_w4", "sel_w4b", "sel_rank", "sel_more", "sel_nomore", "sel_done"))
        if worker:
            a(f"""
            s_cmp_eq_u32 s{sWAVE}, 4
            s_cbranch_scc1 {W4}
            v_lshlrev_b32 v4, 4, v0
            s_mov_b32 s84, {RBOX}
            s_mov_b32 s85, {RBOX + 4096}
            s_mov_b32 s90, {RBOX + 8192}
            s_mov_b32 s91, {RBOX + 12288}
            """)
            self.poll([f"buffer_load_dwordx4 {q4(44+4*k)}, v4, {WS}, s{(84, 85, 90, 91)[k]} offen sc1" for k in range(4)],
                      [k + 1 for k in KY], 42, self.nap)
            self.stamp(6)
            a(f"""
            v_max3_u32 v61, v{KY[0]}, v{KY[1]}, v{KY[2]}
            v_max3_u32 v62, v{KY[3]}, v{KY[4]}, v{KY[5]}
            v_max3_u32 v61, v61, v{KY[6]}, v{KY[7]}
            v_lshrrev_b32 v2, 4, v0
            v_max_u32 v61, v61, v62
            v_lshlrev_b32 v2, 2, v2
            v_max_u32_dpp v62, v61, v61 row_ror:8 row_mask:0xf bank_mask:0xf
            v_max_u32_dpp v62, v62, v62 row_ror:4 row_mask:0xf bank_mask:0xf
            v_max_u32_dpp v62, v62, v62 row_ror:2 row_mask:0xf bank_mask:0xf
            v_max_u32_dpp v62, v62, v62 row_ror:1 row_mask:0xf bank_mask:0xf
            s_mov_b32 s84, 0x00010001
            s_mov_b32 exec_lo, s84
            s_mov_b32 exec_hi, s84
            ds_write_b32 v2, v62 offset:{SEL_G}
            s_mov_b64 exec, -1
            {W4}:
            """)
        a(f"""
        v_and_b32 v8, 15, v{vLANE}
        v_lshlrev_b32 v8, 2, v8
        s_waitcnt lgkmcnt(0)
        s_barrier
        ds_read_b32 v60, v8 offset:{SEL_G}
        """)
        if between:
            between()
        a(f"v_mov_b32 v6, {SEL_N}\nv_mov_b32 v43, 1\ns_waitcnt lgkmcnt(0)\n{RK}:")
        if worker:
            a(f"s_cmp_eq_u32 s{sWAVE}, 4\ns_cbranch_scc1 {NOMORE}")
            self.rank16(60, 62, 63)
            a(f"""
            v_cmp_eq_u32 vcc, 8, v62
            v_mov_b32 v63, v61
            s_ff1_i32_b64 s84, vcc
            v_readlane_b32 s85, v60, s84
            {MORE}:
            v_cmp_le_u32 vcc, s85, v63
            s_and_b64 exec, vcc, vcc
            s_cbranch_execz {NOMORE}
            ds_add_rtn_u32 v62, v6, v43
            """)
            for i in range(8):
                a(f"v_cmp_lt_u32 s[{66+2*i}:{67+2*i}], v{KY[i]}, v63")
            for i in range(8):
                a(f"v_cndmask_b32 v{45+2*i}, 0, v{KY[i]}, s[{66+2*i}:{67+2*i}]")
            a(f"""
            s_waitcnt lgkmcnt(0)
            v_min_u32 v62, 16, v62
            v_lshlrev_b32 v62, 2, v62
            ds_write_b32 v62, v63 offset:{SEL_C}
            v_max3_u32 v63, v45, v47, v49
            v_max3_u32 v62, v51, v53, v55
            v_max3_u32 v63, v63, v57, v59
            v_max_u32 v63, v63, v62
            s_branch {MORE}
            {NOMORE}:
            s_mov_b64 exec, -1
            """)
        a(f"""
        s_waitcnt lgkmcnt(0)
        s_barrier
        ds_read_b32 v62, v6
        ds_read_b32 v60, v8 offset:{SEL_C}
        s_waitcnt lgkmcnt(0)
        v_readfirstlane_b32 s84, v62
        s_cmp_le_u32 s84, 16
        s_cbranch_scc1 {DONE}
        s_barrier
        """)
        self.select_clear()
        a(f"v_mov_b32 v6, {SEL_N}\ns_waitcnt lgkmcnt(0)\ns_barrier\ns_branch {RK}\n{DONE}:")
        self.stamp(7)

    def publish_addr(self, first, vtid, A=2, M=3, E=6, sM=84, sE=85):
        self.a(f"""
        v_and_b32 v8, 3, v{vtid}
        v_lshrrev_b32 v9, 2, v{vtid}
        v_add_u32 v9, {first // 4}, v9
        v_mul_u32_u24 v{A}, {YS}, v8
        v_lshrrev_b32 v42, 5, v9
        v_lshl_add_u32 v{A}, v42, 9, v{A}
        v_and_b32 v42, 1, v9
        v_lshl_add_u32 v{A}, v42, 8, v{A}
        v_bfe_u32 v42, v9, 1, 4
        v_lshl_add_u32 v{A}, v42, 4, v{A}
        v_add_u32 v{A}, {YS0}, v{A}
        v_lshrrev_b32 v{M}, 1, v9
        v_mul_u32_u24 v{M}, 20480, v{M}
        v_and_b32 v8, 7, v{vtid}
        v_lshl_add_u32 v{M}, v8, 4, v{M}
        v_lshrrev_b32 v{E}, 2, v9
        v_mul_u32_u24 v{E}, 20480, v{E}
        v_and_b32 v8, 15, v{vtid}
        v_lshl_add_u32 v{E}, v8, 3, v{E}
        s_lshl_b32 s{sE}, s{sIDX}, 7
        s_add_u32 s{sM}, s{sE}, {YMAIN}
        s_add_u32 s{sE}, s{sE}, {YEXT}
        """)

    def publish_data(self, count, A=2, M=3, E=6, sM=84, sE=85, X=44):
        a = self.a
        for k in range(count):
            a(f"v_mov_b32 v{X+1+2*k}, s{sT}")
        a("s_waitcnt lgkmcnt(0)\ns_barrier")
        for k in range(count):
            a(f"ds_read_b128 {q4(64+4*k)}, v{A} offset:{512*k}")
        for k in range(count):
            a(f"""
            s_waitcnt lgkmcnt({count-1-k})
            v_mov_b32 v{X+2*k}, v{67+4*k}
            v_mov_b32 v{67+4*k}, s{sT}
            buffer_store_dwordx4 {q4(64+4*k)}, v{M}, {WS}, s{sM} offen sc1
            buffer_store_dwordx2 {pr(X+2*k)}, v{E}, {WS}, s{sE} offen sc1
            """)
            if k < count - 1:
                a(f"s_add_u32 s{sM}, s{sM}, 327680\ns_add_u32 s{sE}, s{sE}, 163840")

    def publish_y(self, first, count, vtid):
        self.publish_addr(first, vtid)
        self.publish_data(count)

    def aux_conv(self):
        a = self.a
        if self.w_early:
            self.touch_gate_up()
        a("s_barrier")
        if not self.w_early:
            self.touch_gate_up()
        self.touch_down()
        self.publish_y(0, 6, vLANE)
        self.skip_mask()
        a(f"v_mov_b32 v4, {SKIP}\nds_write_b32 v4, v6\ns_waitcnt lgkmcnt(0)\ns_barrier")

    def idx_poll(self):
        a = self.a
        a(f"v_and_b32 v4, 7, v{vLANE}\nv_lshlrev_b32 v4, 3, v4\ns_and_b32 s84, s2, 7\ns_lshl_b32 s84, s84, 7\ns_add_u32 s84, s84, {IDXBOX}")
        self.poll([f"buffer_load_dwordx2 v[44:45], v4, {WS}, s84 offen sc1"], [45], 42, 2)

    def selector(self):
        a = self.a
        NI = self.lab("noidx")
        self.select(True)
        a(f"s_cmp_lg_u32 s{sWAVE}, 0\ns_cbranch_scc1 {NI}")
        self.rank16(60, 62, 63)
        a(f"""
        v_and_b32 v4, 2047, v60
        v_sub_u32 v44, 2047, v4
        v_mov_b32 v45, s{sT}
        v_sub_u32 v62, 15, v62
        v_lshlrev_b32 v43, 3, v62
        v_cmp_gt_u32 vcc, 8, v62
        s_and_b32 s84, s2, 7
        s_lshl_b32 s85, s84, 7
        s_add_u32 s85, s85, {IDXBOX}
        s_and_b64 exec, vcc, 0xffff
        buffer_store_dwordx2 v[44:45], v43, {WS}, s85 offen sc1
        s_cmp_lg_u32 s84, 0
        s_cbranch_scc1 {NI}
        s_mov_b64 exec, 1
        v_mov_b32 v43, {EPOCH}
        buffer_store_dword v45, v43, {WS}, 0 offen sc1
        {NI}:
        s_mov_b64 exec, -1
        """)
        self.stamp(8)

    def aux_ffn1(self):
        a = self.a
        a(f"""
        v_mov_b32 v48, {ONES}
        v_lshlrev_b32 v4, 2, v{vLANE}
        v_add_u32 v4, {XSEL + 8 * XR}, v4
        ds_write_b32 v4, v48
        """)
        self.idx_poll()
        self.stamp(6)
        a(f"""
        v_lshrrev_b32 v6, 3, v{vLANE}
        v_lshlrev_b32 v4, 2, v6
        ds_bpermute_b32 v46, v4, v44
        v_lshlrev_b32 v43, 4, v44
        s_mov_b32 s89, {STBOX}
        v_and_b32 v8, 7, v{vLANE}
        v_mul_u32_u24 v2, {XR}, v6
        v_lshl_add_u32 v2, v8, 4, v2
        v_add_u32 v2, {XSEL}, v2
        s_waitcnt lgkmcnt(0)
        v_mul_u32_u24 v46, 1280, v46
        v_lshl_add_u32 v46, v8, 4, v46
        """)
        for i in range(10):
            a(f"buffer_load_dwordx4 {q4(64+4*i)}, v46, s[{sQ}:{sQ+3}], 0 offen offset:{128*i}")
        st = [f"buffer_load_dwordx4 v[48:51], v43, {WS}, s89 offen sc1"]
        a(st[0])
        a(("" if self.w_early == 2 else "s_barrier\n") + "v_lshlrev_b32 v8, 3, v8")
        for i in range(10):
            a(f"s_waitcnt vmcnt({10 - i})\nds_write_b128 v2, {q4(64+4*i)} offset:{128*i}")
        self.poll(st, [51], 42, first=False)
        a(f"ds_write_b64 v8, v[48:49] offset:{TOK}\ns_waitcnt lgkmcnt(0)")
        self.stamp(7)
        a("s_barrier\ns_barrier")

    def aux_ffn2(self):
        a = self.a
        self.idx_poll()
        self.stamp(7)
        a(f"""
        v_lshrrev_b32 v6, 4, v{vLANE}
        s_lshl_b32 s84, s{sIDX}, 5
        s_mov_b32 s89, {STBOX}
        v_mov_b32 v61, v44
        v_mul_u32_u24 v62, 1280, v61
        v_lshl_add_u32 v62, v6, 3, v62
        v_add_u32 v62, s84, v62
        buffer_load_dwordx2 v[120:121], v62, s[{sQ}:{sQ+3}], 0 offen
        v_lshlrev_b32 v43, 4, v61
        """)
        self.poll([f"buffer_load_dwordx4 v[80:83], v43, {WS}, s89 offen sc1"], [83], 44)
        srd(a, sOUT, 26, 2621440)
        a(f"""
        s_mov_b32 s84, 0xbfb8aa3b
        v_mul_f32 v42, s84, v82
        v_exp_f32 v42, v42
        v_lshlrev_b32 v116, 16, v120
        v_and_b32 v117, s86, v120
        v_add_f32 v42, 1.0, v42
        v_rcp_f32 v42, v42
        v_lshlrev_b32 v118, 16, v121
        v_and_b32 v119, s86, v121
        v_cvt_pk_bf16_f32 v42, v42, v42
        v_and_b32 v82, s86, v42
        """)
        X4 = [112, 113, 114, 115]
        U4 = [128, 129, 130, 131]
        for i in range(4):
            a(f"v_sub_f32 v{112+i}, v{116+i}, v80")
        self.rnd(X4, 42)
        for i in range(4):
            a(f"v_mul_f32 v{112+i}, v{112+i}, v81")
        self.rnd(X4, 42)
        a(f"""
        v_lshrrev_b32 v8, 1, v6
        v_lshlrev_b32 v8, 8, v8
        s_lshl_b32 s85, s{sIDX}, 9
        v_add_u32 v8, s85, v8
        v_and_b32 v9, 1, v6
        v_lshrrev_b32 v4, 4, v61
        v_mul_u32_u24 v122, 20480, v4
        v_bfe_u32 v4, v61, 3, 1
        v_lshl_add_u32 v122, v4, 6, v122
        v_lshl_add_u32 v122, v9, 5, v122
        v_add_u32 v122, v8, v122
        v_add_u32 v122, {YMAIN}, v122
        v_lshrrev_b32 v4, 5, v61
        v_mul_u32_u24 v123, 20480, v4
        v_bfe_u32 v4, v61, 3, 2
        v_lshl_add_u32 v123, v4, 5, v123
        v_lshl_add_u32 v123, v9, 4, v123
        v_add_u32 v123, v8, v123
        v_add_u32 v123, {YEXT}, v123
        v_bfe_u32 v4, v61, 1, 2
        v_cmp_eq_u32 s[92:93], 1, v4
        v_cmp_eq_u32 s[66:67], 2, v4
        v_cmp_eq_u32 s[68:69], 3, v4
        v_and_b32 v4, 1, v61
        v_lshlrev_b32 v4, 4, v4
        v_sub_u32 v124, 16, v4
        v_lshlrev_b32 v4, 9, v{vLANE}
        v_add_u32 v8, 32768, v4
        v_min_u32 v8, {95 * 512}, v8
        s_mov_b32 s85, {HBOX}
        """)
        if not self.h_direct:
            self.poll([f"buffer_load_dword v46, v4, {WS}, s85 offen offset:8 sc1",
                       f"buffer_load_dword v47, v8, {WS}, s85 offen offset:8 sc1"], [46, 47], 44, self.nap)
        self.stamp(13)
        loads = []
        for i in range(4):
            loads.append(f"buffer_load_dwordx4 {q4(160+4*i)}, v122, {WS}, 0 offen offset:{128*(i&1) + 16*(i>>1)} sc1")
            loads.append(f"buffer_load_dwordx2 {pr(152+2*i)}, v123, {WS}, 0 offen offset:{128*(i&1) + 8*(i>>1)} sc1")
        a(("" if self.h_direct else "s_barrier\n") + f"v_lshlrev_b32 v4, 4, v{vLANE}\ns_barrier")
        for l in loads:
            a(l)
        for wv in range(4):
            a(f"ds_read_b128 {q4(128+4*wv)}, v4 offset:{BIG + 49152 + 1024*wv}")
        a("s_waitcnt lgkmcnt(0)")
        a(f"v_pk_add_f32 {pr(128)}, {pr(128)}, {pr(132)}\nv_pk_add_f32 {pr(130)}, {pr(130)}, {pr(134)}")
        a(f"v_pk_add_f32 {pr(136)}, {pr(136)}, {pr(140)}\nv_pk_add_f32 {pr(138)}, {pr(138)}, {pr(142)}")
        a(f"v_pk_add_f32 {pr(128)}, {pr(128)}, {pr(136)}\nv_pk_add_f32 {pr(130)}, {pr(130)}, {pr(138)}")
        self.rnd(U4, 42)
        for i in range(4):
            a(f"v_mul_f32 v{128+i}, v{128+i}, v82")
        self.rnd(U4, 42)
        for i in range(4):
            a(f"v_add_f32 v{128+i}, v{128+i}, v{112+i}")
        self.rnd(U4, 42)
        self.silu(U4, [132, 133, 134, 135])
        self.rnd(U4, 42)
        self.stamp(8)
        self.poll(loads, [163 + 4 * i for i in range(4)] + [153 + 2 * i for i in range(4)], 42, 2, first=False)
        self.stamp(10)
        for i in range(4):
            a(f"v_cndmask_b32 v{160+4*i}, v{160+4*i}, v{161+4*i}, s[92:93]")
        for i in range(4):
            a(f"v_cndmask_b32 v{160+4*i}, v{160+4*i}, v{162+4*i}, s[66:67]")
        for i in range(4):
            a(f"v_cndmask_b32 v{160+4*i}, v{160+4*i}, v{152+2*i}, s[68:69]")
        for i in range(4):
            a(f"v_lshlrev_b32 v{160+4*i}, v124, v{160+4*i}\nv_and_b32 v{160+4*i}, s86, v{160+4*i}\nv_mul_f32 v{112+i}, v{112+i}, v{160+4*i}")
        self.rnd(X4, 42)
        for i in range(4):
            a(f"v_mul_f32 v{112+i}, v{112+i}, v{128+i}")
        self.rnd(X4, 42)
        for i in range(4):
            a(f"v_add_f32 v{112+i}, v{112+i}, v{116+i}")
        a(f"""
        v_cvt_pk_bf16_f32 v112, v112, v113
        v_cvt_pk_bf16_f32 v113, v114, v115
        s_mov_b32 s82, 0x00ff00ff
        s_mov_b32 exec_lo, s82
        s_mov_b32 exec_hi, s82
        buffer_store_dwordx2 v[112:113], v62, s[{sOUT}:{sOUT+3}], 0 offen nt
        s_mov_b64 exec, -1
        """)
        self.stamp(11)

    def wait_vm(self, n):
        L = self.lab("wv")
        self.a(f"s_cmp_lt_u32 s82, 4\ns_cbranch_scc1 {L}\ns_waitcnt vmcnt({n})\n{L}:\ns_waitcnt vmcnt({n + 4})")

    def conv_loads(self):
        a, ld = self.a, self.ld
        a(f"""
        s_lshr_b32 s92, s{sIDX}, 1
        s_lshl_b32 s92, s92, 3
        s_and_b32 s93, s{sIDX}, 1
        s_add_u32 s92, s92, s93
        s_lshl_b32 s93, s{sWAVE}, 1
        s_add_u32 s92, s92, s93
        s_lshl_b32 s85, s92, 12
        s_lshl_b32 s92, s92, 1
        s_and_b32 s93, s92, 2
        s_lshl_b32 s93, s93, 3
        s_andn2_b32 s92, s92, 3
        s_load_dword s94, s[14:15], s92
        """)
        srd(a, sRA, 12, 2621440)
        a(f"""
        v_lshlrev_b32 v6, 4, v{vLANE}
        v_add_u32 v6, s85, v6
        """)
        for it in range(4):
            a(f"buffer_load_dwordx4 {q4(vR+8*it+4)}, v6, s[{sRA}:{sRA+3}], 0 offen offset:{it*1024} {ld}")

    def kv(self):
        a, ld = self.a, self.ld
        KF, SH, ACC, VF, G = 74, 96, 104, 120, 42
        srd(a, sKK, 6, 2621440)
        srd(a, sVV, 8, 2621440)
        a(f"""
        s_sub_u32 s89, s87, 3840
        s_cmp_eq_u32 s{sW}, 0
        s_cselect_b32 s89, 0, s89
        s_cselect_b32 s90, 0, -1
        buffer_load_dword v7, v6, {WS}, 0 offen sc1
        global_load_dword v{vWR}, v5, s[18:19]
        """)
        for r in range(8):
            a(f"buffer_load_dword v{vQ+r}, v5, s[{sQ}:{sQ+3}], s{87 + r // 4} offen offset:{(r % 4) * 1280}")
        a(f"v_lshlrev_b32 v6, 4, v0\ns_barrier\nglobal_load_dwordx4 {q4(vSH)}, v6, s[10:11]")
        for r in range(3):
            a(f"buffer_load_dword v{vK+r}, v5, s[{sKK}:{sKK+3}], s89 offen offset:{r * 1280}")
        for r in range(8):
            a(f"buffer_load_dword v{vK+3+r}, v5, s[{sKK}:{sKK+3}], s{87 + r // 4} offen offset:{(r % 4) * 1280}")
        for r in range(8):
            a(f"buffer_load_dword v{vV+r}, v5, s[{sVV}:{sVV+3}], s{87 + r // 4} offen offset:{(r % 4) * 1280} {ld}")
        S1, S2, S3, WS_, T = 74, 82, 90, 98, 100
        a(f"""
        v_lshrrev_b32 v8, 3, v{vLANE}
        s_lshl_b32 s85, s{sWAVE}, 7
        v_lshl_add_u32 v8, v8, 4, s85
        s_mov_b32 s84, {ONES}
        s_lshl_b32 s82, s{sCLS}, 4
        s_add_u32 s82, s82, s{sWAVE}
        s_sub_u32 s82, s82, 0x10
        s_waitcnt vmcnt(28)
        v_dot2_f32_bf16 v{WS_}, v{vWR}, s84, 0
        """)
        self.make_tag()
        self.xlane_sum(WS_, WS_ + 1)
        a(f"v_add_f32_dpp v{T+3}, v{WS_}, v{WS_} row_ror:8 row_mask:0xf bank_mask:0xf\ns_waitcnt vmcnt(20)")
        self.stamp(2)
        for r in range(8):
            a(f"""
            v_dot2_f32_bf16 v{S1+r}, v{vQ+r}, s84, 0
            v_dot2_f32_bf16 v{S2+r}, v{vQ+r}, v{vQ+r}, 0
            v_dot2_f32_bf16 v{S3+r}, v{vQ+r}, v{vWR}, 0
            """)
        for sw, n in (("v_permlane32_swap_b32", 4), ("v_permlane16_swap_b32", 2)):
            for r in range(n):
                for b in (S1, S2, S3):
                    a(f"{sw} v{b+r}, v{b+r+n}")
            for r in range(n):
                for b in (S1, S2, S3):
                    a(f"v_add_f32 v{b+r}, v{b+r}, v{b+r+n}")
        for k, b in enumerate((S1, S2, S3)):
            a(f"v_add_f32_dpp v{T+k}, v{b}, v{b} row_ror:8 row_mask:0xf bank_mask:0x3")
        for k, b in enumerate((S1, S2, S3)):
            a(f"v_add_f32_dpp v{T+k}, v{b+1}, v{b+1} row_ror:8 row_mask:0xf bank_mask:0xc")
        for mod in ("row_half_mirror", "quad_perm:[1,0,3,2]", "quad_perm:[2,3,0,1]"):
            for k in (3, 0, 1, 2):
                a(f"v_add_f32_dpp v{T+k}, v{T+k}, v{T+k} {mod} row_mask:0xf bank_mask:0xf")
        NC = self.lab("noconv")
        a(f"""
        s_mov_b32 s92, 0x01010101
        s_mov_b32 exec_lo, s92
        s_mov_b32 exec_hi, s92
        ds_write_b128 v8, {q4(T)} offset:{RED}
        s_mov_b64 exec, -1
        v_lshrrev_b32 v4, 3, v0
        v_mul_u32_u24 v4, 98304, v4
        v_and_b32 v6, 7, v0
        v_lshl_add_u32 v4, v6, 4, v4
        s_lshl_b32 s84, s{sW}, 7
        s_add_u32 s91, s84, 32768
        s_add_u32 s89, s84, 65536
        s_waitcnt lgkmcnt(0)
        s_barrier
        s_cmp_ge_u32 s82, 4
        s_cbranch_scc1 {NC}
        """)
        self.conv_loads()
        a(f"{NC}:")
        self.wait_vm(19)
        for j in range(4):
            for c in range(2):
                src = vSH + 2 * c + j // 2
                a(f"v_lshlrev_b32 v{SH+2*j+c}, 16, v{src}" if j % 2 == 0 else f"v_and_b32 v{SH+2*j+c}, s86, v{src}")
        self.wait_vm(8)
        self.stamp(1)
        for r in range(3):
            a(f"v_and_b32 v{vK+r}, s90, v{vK+r}")
        for r in range(11):
            a(f"v_lshlrev_b32 v{KF+2*r}, 16, v{vK+r}\nv_and_b32 v{KF+2*r+1}, s86, v{vK+r}")
        for r in range(8):
            a(f"v_pk_mul_f32 {pr(ACC+2*r)}, {pr(KF+2*r)}, {pr(SH+6)}")
        for j in (2, 1, 0):
            for r in range(8):
                a(f"v_pk_fma_f32 {pr(ACC+2*r)}, {pr(KF+2*(r+3-j))}, {pr(SH+2*j)}, {pr(ACC+2*r)}")
        for g in (3, 7, 9, 11):
            a(f"v_mov_b32 v{G+g}, s{sT}")
        self.wait_vm(0)
        self.stamp(3)
        for r in range(8):
            a(f"v_lshlrev_b32 v{VF+2*(r%4)}, 16, v{vV+r}\nv_and_b32 v{VF+2*(r%4)+1}, s86, v{vV+r}")
            a(f"v_pk_mul_f32 {pr(ACC+2*r)}, {pr(ACC+2*r)}, {pr(VF+2*(r%4))}")
        for c in range(2):
            for d in range(4):
                dst = G + 4 * c + d if d < 3 else G + 8 + 2 * c
                a(f"v_cvt_pk_bf16_f32 v{dst}, v{ACC+2*(7-2*d)+c}, v{ACC+2*(6-2*d)+c}")
        a(f"""
        buffer_store_dwordx4 {q4(G)}, v4, {WS}, s84 offen sc1
        buffer_store_dwordx4 {q4(G+4)}, v4, {WS}, s91 offen sc1
        buffer_store_dwordx4 {q4(G+8)}, v4, {WS}, s89 offen sc1
        """)
        self.stamp(4)
        a(f"""
        v_and_b32 v6, 7, v{vLANE}
        v_lshlrev_b32 v6, 4, v6
        s_barrier
        ds_read_b64 {pr(vST)}, v6 offset:{STAT}
        """)

    def p3_pre(self):
        a = self.a
        T = 200
        for r in range(8):
            a(f"v_readlane_b32 s{sST+2*r}, v{vST}, {r}\nv_readlane_b32 s{sST+2*r+1}, v{vST+1}, {r}")
        a("s_mov_b32 s84, 0xbfb8aa3b")
        for r in range(8):
            a(f"v_lshlrev_b32 v{vX+2*r}, 16, v{vQ+r}\nv_and_b32 v{vX+2*r+1}, s86, v{vQ+r}")
        for h in range(2):
            rows = range(4 * h, 4 * h + 4)
            t = lambda r, k: T + 6 * (r % 4) + k
            steps = [
                lambda r: f"v_pk_add_f32 {pr(t(r,0))}, {pr(vX+2*r)}, s[{sST+2*r}:{sST+2*r+1}] op_sel_hi:[1,0] neg_lo:[0,1] neg_hi:[0,1]",
                lambda r: f"v_cvt_pk_bf16_f32 v{t(r,2)}, v{t(r,0)}, v{t(r,1)}",
                lambda r: f"v_lshlrev_b32 v{t(r,0)}, 16, v{t(r,2)}\nv_and_b32 v{t(r,1)}, s86, v{t(r,2)}",
                lambda r: f"v_pk_mul_f32 {pr(t(r,0))}, {pr(t(r,0))}, s[{sST+2*r}:{sST+2*r+1}] op_sel:[0,1] op_sel_hi:[1,1]",
                lambda r: f"v_cvt_pk_bf16_f32 v{t(r,2)}, v{t(r,0)}, v{t(r,1)}",
                lambda r: f"v_lshlrev_b32 v{t(r,0)}, 16, v{t(r,2)}\nv_and_b32 v{t(r,1)}, s86, v{t(r,2)}",
                lambda r: f"v_pk_mul_f32 {pr(t(r,2))}, {pr(t(r,0))}, s[84:85] op_sel_hi:[1,0]",
                lambda r: f"v_exp_f32 v{t(r,2)}, v{t(r,2)}\nv_exp_f32 v{t(r,3)}, v{t(r,3)}",
                lambda r: f"v_pk_add_f32 {pr(t(r,2))}, {pr(t(r,2))}, 1.0 op_sel_hi:[1,0]",
                lambda r: f"v_rcp_f32 v{t(r,2)}, v{t(r,2)}\nv_rcp_f32 v{t(r,3)}, v{t(r,3)}",
                lambda r: f"v_pk_mul_f32 {pr(t(r,2))}, {pr(t(r,2))}, {pr(t(r,0))}",
                lambda r: f"v_cvt_pk_bf16_f32 v{t(r,4)}, v{t(r,2)}, v{t(r,3)}",
                lambda r: f"v_lshlrev_b32 v{t(r,2)}, 16, v{t(r,4)}\nv_and_b32 v{t(r,3)}, s86, v{t(r,4)}",
                lambda r: f"v_pk_mul_f32 {pr(vC+2*r)}, {pr(t(r,0))}, {pr(t(r,2))}",
            ]
            for st in steps:
                for r in rows:
                    a(st(r))

    def conv(self):
        a = self.a
        ACC = 192
        SET = [(64, 96), (128, 160)]
        W4, FIN = self.lab("conv_w4"), self.lab("conv_fin")
        a(f"""
        s_cmp_eq_u32 s{sWAVE}, 4
        s_cbranch_scc1 {W4}
        s_mul_i32 s84, s{sWAVE}, {HC_S}
        s_add_u32 s84, s84, {HC0}
        v_lshlrev_b32 v4, 4, v{vLANE}
        v_add_u32 v4, s84, v4
        v_mov_b32 v120, 0
        v_mov_b32 v121, 0
        v_mov_b32 v122, 0
        v_mov_b32 v123, 0
        v_mov_b32 v{vR+2}, 0
        v_mov_b32 v{vR+3}, 0
        s_waitcnt vmcnt(3)
        """)
        for it in range(1, 4):
            for d in (2, 3):
                a(f"v_mov_b32_dpp v{vR+8*it+d}, v{vR+8*it-4+d} wave_ror:1 row_mask:0xf bank_mask:0xf")
        for it in range(4):
            for d in (2, 3):
                a(f"v_mov_b32_dpp v{vR+8*it+d}, v{vR+8*it+4+d} wave_shr:1 row_mask:0xf bank_mask:0xf")
        self.stamp(13)
        a(f"""
        s_lshr_b32 s85, s{sIDX}, 2
        s_mul_i32 s85, s85, 98304
        s_lshl_b32 s90, s{sIDX}, 5
        s_and_b32 s90, s90, 64
        s_add_u32 s85, s85, s90
        s_and_b32 s91, s{sIDX}, 1
        s_lshl_b32 s90, s91, 15
        s_add_u32 s90, s90, s85
        s_lshl_b32 s91, s91, 3
        s_add_u32 s85, s85, s91
        s_add_u32 s85, s85, 65536
        v_lshrrev_b32 v2, 2, v0
        v_and_b32 v3, 3, v0
        v_lshlrev_b32 v3, 4, v3
        v_lshl_add_u32 v2, v2, 7, v3
        v_add_u32 v3, s85, v2
        v_add_u32 v2, s90, v2
        s_movk_i32 s89, 0x2000
        s_movk_i32 s90, 0x4000
        s_movk_i32 s91, 0x6000
        """)
        so = ["0", "s89", "s90", "s91"]
        loads = []
        for k in range(4):
            loads.append(f"buffer_load_dwordx4 {q4(96+4*k)}, v2, {WS}, {so[k]} offen sc1")
            loads.append(f"buffer_load_dwordx2 {pr(112+2*k)}, v3, {WS}, {so[k]} offen sc1")
        for it in range(4):
            W = vR + 8 * it + 4
            O = 64 + 12 * (it % 2)
            if it == self.gather_at:
                a("s_waitcnt vmcnt(0)")
                for l in loads:
                    a(l)
            a(f"ds_write_b128 v4, {q4(W)} offset:{32 + 1024*it}")
            for d in range(4):
                a(f"v_alignbyte_b32 v{O+d}, v{W+d}, v{W+d-1}, 2")
            for d in range(4):
                a(f"v_mov_b32 v{O+4+d}, v{W+d-1}")
            for d in range(4):
                a(f"v_alignbyte_b32 v{O+8+d}, v{W+d-1}, v{W+d-2}, 2")
            for k in range(1, 4):
                a(f"ds_write_b128 v4, {q4(O+4*(k-1))} offset:{k*HC_K + 32 + 1024*it}")
        a(f"""
        s_mul_i32 s85, s{sWAVE}, {XS}
        s_add_u32 s85, s85, {XB}
        v_min_u32 v4, 29, v{vLANE}
        v_lshl_add_u32 v4, v4, 4, s85
        ds_write_b128 v4, v[120:123]
        v_and_b32 v6, 7, v{vLANE}
        v_lshrrev_b32 v4, 1, v6
        v_mul_u32_u24 v4, {HC_K}, v4
        v_and_b32 v6, 1, v6
        v_lshl_add_u32 v4, v6, 4, v4
        v_add_u32 v4, s84, v4
        ds_write_b128 v4, v[120:123]
        s_waitcnt lgkmcnt(0)
        s_lshr_b32 s94, s94, s93
        s_and_b32 s94, s94, 0xffff
        v_lshrrev_b32 v6, 4, v{vLANE}
        v_and_b32 v8, 15, v{vLANE}
        v_lshlrev_b32 v4, 3, v6
        v_add_u32 v4, v4, v8
        v_sub_u32 v4, 15, v4
        v_and_b32 v42, 1, v4
        v_lshlrev_b32 v42, 4, v42
        v_lshlrev_b32 v42, v42, s94
        v_ashrrev_i32 v4, 1, v4
        """)
        for d in range(4):
            a(f"v_cmp_eq_u32 vcc, {d}, v4\nv_cndmask_b32 v{224+d}, 0, v42, vcc")
        a(f"""
        v_add_u32 v4, 1, v8
        v_sub_u32 v42, 0, v4
        v_and_b32 v42, 3, v42
        v_add_u32 v4, v4, v42
        v_lshl_add_u32 v4, v6, 3, v4
        v_mul_u32_u24 v42, {HC_K}, v42
        v_lshl_add_u32 v4, v4, 1, v42
        v_add_u32 v228, s84, v4
        v_lshlrev_b32 v4, 1, v8
        v_sub_u32 v4, v4, v6
        v_add_u32 v4, {31 - convloop.BBIAS // 16}, v4
        v_lshl_add_u32 v229, v4, 4, s85
        v_and_b32 v4, 1, v6
        v_lshlrev_b32 v4, 9, v4
        v_lshrrev_b32 v6, 1, v6
        v_lshl_add_u32 v4, v6, 8, v4
        v_lshl_add_u32 v4, v8, 4, v4
        s_mul_i32 s84, s{sWAVE}, {YS}
        s_add_u32 s84, s84, {YS0}
        v_add_u32 v230, s84, v4
        v_and_b32 v4, 3, v0
        v_mul_u32_u24 v4, {XS}, v4
        v_lshrrev_b32 v6, 2, v0
        v_lshl_add_u32 v4, v6, 4, v4
        """)
        self.publish_addr(768, 0, 242, 243, 244, 92, 93)
        self.stamp(5)
        self.poll(loads, [99 + 4 * k for k in range(4)] + [113 + 2 * k for k in range(4)], 42, self.nap, first=False)
        self.stamp(6)
        for k in range(4):
            a(f"v_mov_b32 v{99+4*k}, v{112+2*k}")
        for k in range(4):
            a(f"ds_write_b128 v4, {q4(96+4*k)} offset:{XB + 480 + 1024*k}")
        a("s_waitcnt lgkmcnt(0)\ns_barrier")
        self.stamp(14)

        def stage_out(tiles, base):
            out = []
            for i, n in enumerate(tiles):
                out += [f"v_cvt_pk_bf16_f32 v{base+2*i}, v{ACC+4*n}, v{ACC+4*n+1}", f"v_cvt_pk_bf16_f32 v{base+2*i+1}, v{ACC+4*n+2}, v{ACC+4*n+3}"]
            for m in range(len(tiles) // 2):
                out += [f"v_permlane16_swap_b32 v{base+4*m}, v{base+4*m+2}", f"v_permlane16_swap_b32 v{base+4*m+1}, v{base+4*m+3}"]
            for m in range(len(tiles) // 2):
                out.append(f"ds_write_b128 v230, {q4(base+4*m)} offset:{512*tiles[2*m]}")
            return out

        rd = convloop.read_list(0, 0, 7, 0)
        rb = [r for f, r in rd if f[0] == "B"]
        ra = [r for f, r in rd if f[0] == "A" and f[1] < 6]
        for r in rb + ra[:6]:
            a(r)
        a("s_waitcnt lgkmcnt(6)")
        for i, b in enumerate(range(7, -1, -1)):
            a(f"v_mfma_f32_16x16x32_bf16 {q4(ACC+4*b)}, v[224:227], {q4(96+4*b)}, 0")
            for r in ra[6 + 2 * i: 8 + 2 * i]:
                a(r)
        a("s_waitcnt lgkmcnt(0)")
        so = stage_out(range(6), 44)
        for l in convloop.schedule([(0, 5), (6, 7)], {8: so[:7], 9: so[7:14], 10: so[14:], 11: ["s_barrier"]}):
            a(l)
        self.stamp(7)
        for l in stage_out((6, 7), 56):
            a(l)
        self.publish_data(1, 242, 243, 244, 92, 93, 60)
        a(f"s_branch {FIN}\n{W4}:\ns_barrier\nv_add_u32 v4, 64, v{vLANE}")
        self.publish_y(0, 6, 4)
        a(f"s_barrier\n{FIN}:\nv_mov_b32 v8, {SKIP}\nds_read_b32 v9, v8\ns_waitcnt lgkmcnt(0)\nv_readfirstlane_b32 s{sSKIP}, v9")
        self.stamp(8)

    def ffn1(self):
        a = self.a
        FR, CS, AC, QF = 128, 192, 208, 64
        FIN = self.lab("ffn1_done")
        srd(a, sRA, 20, 1966080)
        srd(a, sRB, 22, 1966080)

        a(f"""
        v_lshrrev_b32 v6, 2, v{vLANE}
        v_mul_u32_u24 v4, 3072, v6
        v_and_b32 v6, 3, v{vLANE}
        v_lshl_add_u32 v4, v6, 4, v4
        s_lshl_b32 s91, s{sIDX}, 6
        s_mul_i32 s92, s{sWAVE}, {128 * 3072}
        s_add_u32 s91, s91, s92
        s_and_b32 s93, s{sIDX}, 1
        s_mul_i32 s92, s93, {32 * 3072}
        s_add_u32 s90, s91, s92
        s_sub_u32 s92, s91, s92
        s_add_u32 s92, s92, {32 * 3072}
        s_add_u32 s91, s91, {64 * 3072}
        s_lshl_b32 s93, s93, 11
        {"" if self.w_early == 2 else "s_barrier"}
        """)
        for i in range(8):
            so = ("s90", "s90", "s92", "s92", "s91", "s91", "s91", "s91")[i]
            a(f"buffer_load_dwordx4 {q4(vR+4*i)}, v4, s[{sRA}:{sRA+3}], {so} offen")
            a(f"buffer_load_dwordx4 {q4(vR+32+4*i)}, v4, s[{sRB}:{sRB+3}], {so} offen")
            a(f"s_add_u32 {so}, {so}, {16 * 3072}")
        a(f"""
        v_lshrrev_b32 v6, 2, v{vLANE}
        v_bfe_u32 v4, v{vLANE}, 5, 1
        v_lshlrev_b32 v4, 1, v4
        v_and_b32 v8, 3, v{vLANE}
        v_xor_b32 v4, v4, v8
        v_lshlrev_b32 v4, 4, v4
        v_lshl_add_u32 v4, v6, 6, v4
        s_lshl_b32 s84, s{sWAVE}, 14
        s_add_u32 s84, s84, {BIG}
        v_add_u32 v2, s84, v4
        v_lshrrev_b32 v6, 4, v{vLANE}
        v_bfe_u32 v4, v{vLANE}, 2, 2
        v_lshl_add_u32 v4, v6, 3, v4
        v_lshlrev_b32 v4, 6, v4
        v_lshl_add_u32 v4, v8, 3, v4
        v_and_b32 v6, 1, v6
        v_lshl_add_u32 v4, v6, 5, v4
        v_add_u32 v4, s84, v4
        v_xor_b32 v6, 32, v4
        v_add_u32 v3, s93, v2
        s_xor_b32 s93, s93, 2048
        v_add_u32 v8, s93, v2
        """)
        for i in range(8):
            base, off = (("v3", 0), ("v3", 1024), ("v8", 0), ("v8", 1024))[i] if i < 4 else ("v2", 1024 * i)
            a(f"s_waitcnt vmcnt({14 - 2*i})\nds_write_b128 {base}, {q4(vR+4*i)} offset:{off}\nds_write_b128 {base}, {q4(vR+32+4*i)} offset:{8192 + off}")
        a("s_waitcnt lgkmcnt(0)")
        fr = lambda s, m, t: FR + 16 * s + 8 * m + 4 * t
        for s in range(4):
            for m in range(2):
                for t in range(2):
                    for hh in range(2):
                        a(f"ds_read_b64_tr_b16 {pr(fr(s,m,t)+2*hh)}, v{(4,6)[t]} offset:{8192*m + 2048*s + 256*hh}")
            a("s_waitcnt lgkmcnt(0)" if s % 2 else "s_waitcnt lgkmcnt(7)")
        a(f"""
        v_and_b32 v8, 15, v{vLANE}
        v_lshrrev_b32 v6, 4, v{vLANE}
        v_mul_u32_u24 v4, {XR}, v8
        s_lshl_b32 s84, s{sWAVE}, 8
        v_add_u32 v4, s84, v4
        v_min_u32 v4, {8 * XR}, v4
        v_lshl_add_u32 v4, v6, 4, v4
        v_add_u32 v4, {XSEL}, v4
        """)
        self.stamp(5)
        a("s_barrier")
        for s in range(4):
            a(f"ds_read_b128 {q4(QF+4*s)}, v4 offset:{64*s}")
        a("s_waitcnt lgkmcnt(0)")
        self.stamp(13)
        for s in range(4):
            for m in range(2):
                for t in range(2):
                    c = AC + 8 * m + 4 * t
                    a(f"v_mfma_f32_16x16x32_bf16 {q4(c)}, {q4(fr(s,m,t))}, {q4(QF+4*s)}, " + ("0" if s == 0 else q4(c)))
        a(f"""
        s_lshl_b32 s84, s{sWAVE}, 14
        s_add_u32 s84, s84, {BIG}
        v_lshlrev_b32 v4, 4, v{vLANE}
        v_add_u32 v4, s84, v4
        """)
        for q in range(4):
            a(f"ds_write_b128 v4, {q4(AC+4*q)} offset:{1024*q}")
        a(f"""
        v_lshlrev_b32 v4, 4, v8
        v_lshl_add_u32 v4, v6, 7, v4
        v_and_b32 v8, 7, v8
        v_lshlrev_b32 v8, 3, v8
        s_lshl_b32 s85, s{sIDX}, 1
        s_add_u32 s85, s85, s{sWAVE}
        s_lshl_b32 s85, s85, 9
        s_add_u32 s85, s85, {HBOX}
        s_lshl_b32 s84, s{sWAVE}, 10
        s_add_u32 s84, s84, {BIG}
        ds_read_b64 v[84:85], v8 offset:{TOK}
        v_lshlrev_b32 v2, 4, v{vLANE}
        v_add_u32 v2, s84, v2
        v_mov_b32 v46, s{sT}
        v_mov_b32 v47, s{sT}
        s_waitcnt lgkmcnt(0)
        s_barrier
        s_cmp_ge_u32 s{sWAVE}, 2
        s_cbranch_scc1 {FIN}
        v_sub_f32 v84, 0, v84
        v_add_u32 v3, 49152, v2
        s_mov_b32 s84, 0xbfb8aa3b
        """)
        for wv in range(5):
            base, off = ("v2", 16384 * wv) if wv < 3 else ("v3", 16384 * (wv - 3))
            a(f"ds_read_b128 {q4(128+8*wv)}, {base} offset:{off}\nds_read_b128 {q4(132+8*wv)}, {base} offset:{off+2048}")
        a("s_waitcnt lgkmcnt(6)")
        for i in range(0, 8, 2):
            a(f"v_pk_add_f32 {pr(128+i)}, {pr(128+i)}, {pr(136+i)}")
        a("s_waitcnt lgkmcnt(2)")
        for i in range(0, 8, 2):
            a(f"v_pk_add_f32 {pr(144+i)}, {pr(144+i)}, {pr(152+i)}")
        for i in range(0, 8, 2):
            a(f"v_pk_add_f32 {pr(128+i)}, {pr(128+i)}, {pr(144+i)}")
        a("s_waitcnt lgkmcnt(0)")
        for i in range(0, 8, 2):
            a(f"v_pk_add_f32 {pr(128+i)}, {pr(128+i)}, {pr(160+i)}")
        for i in range(8):
            a(f"v_fmac_f32_dpp v{128+i}, v{128+i}, v84 row_ror:8 row_mask:0xf bank_mask:0xf")
        for i in range(0, 8, 2):
            a(f"v_pk_mul_f32 {pr(128+i)}, {pr(128+i)}, v[84:85] op_sel:[0,1] op_sel_hi:[1,1]")
        self.rnd(list(range(128, 136)), 140)
        self.silu([128, 129, 130, 131], [136, 137, 138, 139])
        self.rnd([128, 129, 130, 131], 140)
        a(f"""
        v_pk_mul_f32 {pr(128)}, {pr(128)}, {pr(132)}
        v_pk_mul_f32 {pr(130)}, {pr(130)}, {pr(134)}
        s_mov_b32 s82, 0x00ff00ff
        v_cvt_pk_bf16_f32 v44, v128, v129
        v_cvt_pk_bf16_f32 v45, v130, v131
        s_mov_b32 exec_lo, s82
        s_mov_b32 exec_hi, s82
        buffer_store_dwordx4 v[44:47], v4, {WS}, s85 offen sc1
        s_mov_b64 exec, -1
        {FIN}:
        """)
        self.stamp(8)

    def ffn2(self):
        a = self.a
        FR, HB = 176, 64
        W4, W4B, NOTW = self.lab("ffn2_w4"), self.lab("ffn2_w4b"), self.lab("ffn2_notw")
        a("s_waitcnt lgkmcnt(0)\ns_call_b64 s[92:93], L_gate")
        self.skip_mask()
        a(f"v_readfirstlane_b32 s{sSKIP}, v6\ns_cmp_eq_u32 s{sWAVE}, 4\ns_cbranch_scc1 {W4}")
        srd(a, sRA, 24, 1966080)
        a(f"""
        v_lshrrev_b32 v6, 1, v{vLANE}
        v_mul_u32_u24 v6, 1280, v6
        v_and_b32 v8, 1, v{vLANE}
        v_lshl_add_u32 v6, v8, 4, v6
        s_lshl_b32 s91, s{sIDX}, 5
        s_mul_i32 s92, s{sWAVE}, {384 * 1280}
        s_add_u32 s91, s91, s92
        """)
        for i in range(12):
            a(f"buffer_load_dwordx4 {q4(vR+4*i)}, v6, s[{sRA}:{sRA+3}], s91 offen")
            if i < 11:
                a(f"s_add_u32 s91, s91, {32 * 1280}")
        a(f"""
        s_mul_i32 s84, s{sWAVE}, 12288
        s_add_u32 s85, s84, {BIG}
        v_lshlrev_b32 v4, 4, v{vLANE}
        v_add_u32 v4, s85, v4
        v_lshlrev_b32 v2, 3, v{vLANE}
        v_add_u32 v2, s85, v2
        """)
        for i in range(12):
            a(f"s_waitcnt vmcnt({11 - i})\nds_write_b128 v4, {q4(vR+4*i)} offset:{1024*i}")
        a("s_waitcnt lgkmcnt(0)")
        for n in range(24):
            a(f"ds_read_b64_tr_b16 {pr(FR+2*n)}, v2 offset:{512*n}")
            if n % 12 == 11:
                a("s_waitcnt lgkmcnt(0)")
        a(f"""
        v_and_b32 v4, 7, v{vLANE}
        v_lshlrev_b32 v4, 4, v4
        v_lshrrev_b32 v6, 4, v{vLANE}
        v_lshl_add_u32 v4, v6, 7, v4
        v_bfe_u32 v6, v{vLANE}, 3, 1
        v_lshl_add_u32 v4, v6, 9, v4
        v_mov_b32 v2, v4
        {W4}:
        """)
        a(f"s_mul_i32 s84, s{sWAVE}, 12288\ns_add_u32 s84, s84, {HBOX}\ns_add_u32 s85, s84, 4096\ns_add_u32 s90, s84, 8192")
        self.stamp(5)
        a(("" if self.h_direct else "s_barrier\n") + f"s_cmp_eq_u32 s{sWAVE}, 4\ns_cbranch_scc1 {NOTW}")
        self.poll([f"buffer_load_dwordx3 v[{HB+4*m}:{HB+4*m+2}], v2, {WS}, s{(84, 85, 90)[m // 4]} offen offset:{1024*(m%4)} sc1" for m in range(12)],
                  [HB + 4 * m + 2 for m in range(12)], 42, self.nap)
        self.stamp(6)
        for m in range(12):
            for hi in range(2):
                c = 112 + 4 * hi
                a(f"v_mfma_f32_16x16x16_bf16 {q4(c)}, {pr(FR+2*(2*m+hi))}, {pr(HB+4*m)}, " + ("0" if m == 0 else q4(c)))
        a(f"s_lshl_b32 s84, s{sWAVE}, 10\nv_lshlrev_b32 v4, 4, v{vLANE}\nv_add_u32 v4, s84, v4")
        for i in range(4):
            a(f"v_add_f32_dpp v{112+i}, v{116+i}, v{112+i} row_ror:8 row_mask:0xf bank_mask:0xf")
        a(f"ds_write_b128 v4, v[112:115] offset:{BIG + 49152}\n{NOTW}:\ns_waitcnt lgkmcnt(0)\ns_barrier")
        self.stamp(8)

    def skip_mask(self):
        a = self.a
        self.idx_poll()
        a(f"""
        v_lshrrev_b32 v4, 3, v44
        v_and_b32 v6, 7, v44
        v_lshlrev_b32 v6, v6, 1
        v_cmp_eq_u32 vcc, s{sW}, v4
        v_cndmask_b32 v6, 0, v6, vcc
        v_or_b32_dpp v6, v6, v6 row_half_mirror row_mask:0xf bank_mask:0xf
        v_or_b32_dpp v6, v6, v6 quad_perm:[1,0,3,2] row_mask:0xf bank_mask:0xf
        v_or_b32_dpp v6, v6, v6 quad_perm:[2,3,0,1] row_mask:0xf bank_mask:0xf
        """)

    def p3(self):
        a = self.a
        NC, GO, CHK = self.lab("p3_nc"), self.lab("p3_go"), self.lab("p3_chk")
        srd(a, sOUT, 26, 2621440)
        a(f"s_bitcmp1_b32 s{sCLS}, 0\ns_cbranch_scc1 {NC}\ns_call_b64 s[92:93], L_gate")
        self.skip_mask()
        a(f"""
        v_readfirstlane_b32 s{sSKIP}, v6
        v_and_b32 v4, 7, v{vLANE}
        v_mul_u32_u24 v4, 2560, v4
        s_sub_u32 s84, s{sW}, 64
        s_cmp_ge_u32 s{sW}, 192
        s_cselect_b32 s84, s84, s{sW}
        s_lshr_b32 s84, s84, 1
        s_mul_i32 s84, s84, 20480
        s_add_u32 s84, s84, {YMAIN + 19 * 128}
        """)
        self.poll([f"buffer_load_dword v44, v4, {WS}, s84 offen offset:12 sc1"], [44], 42, 2)
        a(f"""
        {NC}:
        v_lshrrev_b32 v6, 2, v0
        v_lshlrev_b32 v6, 8, v6
        v_and_b32 v8, 3, v0
        v_lshl_add_u32 v4, v8, 4, v6
        v_lshl_add_u32 v6, v8, 3, v6
        s_lshr_b32 s90, s{sW}, 1
        s_mul_i32 s90, s90, 20480
        s_and_b32 s85, s{sW}, 1
        s_lshl_b32 s85, s85, 6
        s_add_u32 s90, s90, s85
        s_add_u32 s90, s90, {YMAIN}
        s_lshr_b32 s89, s{sW}, 2
        s_mul_i32 s89, s89, 20480
        s_and_b32 s85, s{sW}, 3
        s_lshl_b32 s85, s85, 5
        s_add_u32 s89, s89, s85
        s_add_u32 s89, s89, {YEXT}
        """)
        loads = [f"buffer_load_dwordx4 v[44:47], v4, {WS}, s90 offen sc1",
                 f"buffer_load_dwordx4 v[48:51], v4, {WS}, s90 offen offset:128 sc1",
                 f"buffer_load_dwordx2 v[52:53], v6, {WS}, s89 offen sc1",
                 f"buffer_load_dwordx2 v[54:55], v6, {WS}, s89 offen offset:128 sc1"]
        for l in loads:
            a(l)
        a(f"s_cmp_lg_u32 s{sCLS}, 1\ns_cbranch_scc1 {GO}\ns_call_b64 s[92:93], L_gate\n{GO}:")
        self.stamp(9)
        self.poll(loads, [47, 51, 53, 55], 42, self.nap, first=False)
        self.stamp(10)
        for r in range(8):
            d = r // 2
            ya, yb = (44 + d, 48 + d) if d < 3 else (52, 54)
            t = 56 + 2 * r
            if r % 2 == 0:
                a(f"v_lshlrev_b32 v{t}, 16, v{ya}\nv_lshlrev_b32 v{t+1}, 16, v{yb}")
            else:
                a(f"v_and_b32 v{t}, s86, v{ya}\nv_and_b32 v{t+1}, s86, v{yb}")
            L = self.lab("skip")
            a(f"""
            v_pk_fma_f32 {pr(t)}, {pr(t)}, {pr(vC+2*r)}, {pr(vX+2*r)}
            s_bitcmp1_b32 s{sSKIP}, {r}
            v_cvt_pk_bf16_f32 v{t}, v{t}, v{t+1}
            s_cbranch_scc1 {L}
            buffer_store_dword v{t}, v5, s[{sOUT}:{sOUT+3}], s{87 + r // 4} offen offset:{(r % 4) * 1280} nt
            {L}:
            """)
        self.stamp(11)

    def kernel(self):
        a = self.a
        self.prologue()
        self.kv()
        a(f"s_cmp_lg_u32 s{sCLS}, 1\ns_cbranch_scc1 L_c2")
        self.conv()
        a(f"s_branch L_p3\nL_c2:\ns_cmp_lg_u32 s{sCLS}, 2\ns_cbranch_scc1 L_c3")
        self.ffn1()
        a(f"s_branch L_p3\nL_c3:\ns_cmp_lg_u32 s{sCLS}, 3\ns_cbranch_scc1 L_c0")
        self.ffn2()
        a("s_branch L_p3\nL_c0:")
        self.selector()
        a("L_p3:")
        self.p3()
        a("s_branch L_fin\nL_aux:")
        self.aux_stats()
        a(f"s_cmp_lg_u32 s{sCLS}, 1\ns_cbranch_scc1 L_a2")
        self.aux_conv()
        a(f"s_branch L_fin\nL_a2:\ns_cmp_lg_u32 s{sCLS}, 2\ns_cbranch_scc1 L_a3")
        self.aux_ffn1()
        a(f"s_branch L_fin\nL_a3:\ns_cmp_lg_u32 s{sCLS}, 3\ns_cbranch_scc1 L_a0")
        self.aux_ffn2()
        a("s_branch L_fin\nL_a0:")
        self.select(False)
        a("L_fin:")
        self.finish_wave()
        a("L_end:\ns_endpgm\nL_gate:")
        self.p3_pre()
        a("s_setpc_b64 s[92:93]\nL_code_end:")
        lines, _ = hazard.fix(a.lines)
        return "\n".join(l for l in lines if l.strip()) + "\n"


def emit(**kw):
    return (f"; @launch grid=(256,1,1) block=(384,1,1) lds={LDS_BYTES}\n" + '.amdgcn_target "amdgcn-amd-amdhsa--gfx950"\n'
            + kernel_block(KNAME + "_kernel", Gen(**kw).kernel(), 256))


if __name__ == "__main__":
    open("fused.s", "w").write(emit())
    open("fused_st.s", "w").write(emit(stamps=True))
    open("fused_st_a.s", "w").write(emit(stamps=True, w_early=2))
    open("fused_st_b.s", "w").write(emit(stamps=True, w_early=1, h_direct=0))
    open("fused_st_c.s", "w").write(emit(stamps=True, w_early=2, h_direct=0))
```
